```python
import torch

def _softmax(x, axis=-1):
    return torch.softmax(x, dim=axis)

def _gelu(x):
    return torch.nn.functional.gelu(x, approximate='tanh')

def _silu(x):
    return torch.nn.functional.silu(x)

def _sigmoid(x):
    return torch.sigmoid(x)

def _layernorm(x, axis=-1, eps=1e-05):
    m = x.mean(dim=axis, keepdim=True)
    v = x.var(dim=axis, keepdim=True, unbiased=False)
    return (x - m) / torch.sqrt(v + eps)

def _scatter_add(tgt, idx, src, axis=0):
    return tgt.clone().index_add_(axis, idx, src)

def _segment_sum(src, seg, n):
    out = torch.zeros((n,) + src.shape[1:], dtype=src.dtype)
    return out.index_add_(0, seg, src)

def _pad(x, pw):
    flat = tuple((v for pair in reversed(pw) for v in pair))
    return torch.nn.functional.pad(x, flat)
kernel_name = 'adaLN_cond__ssm_conv_s4d__geglu_ffn__prompt'

def setup_inputs():

    _w = lambda a: (lambda t: t.to(torch.bfloat16) if t.is_floating_point() else t)(torch.as_tensor(a))

    def _A_setup():
        Bsz, L, D, N = (1, 2048, 640, 192)
        return {'u': _w((lambda *s: torch.randn(*s, dtype=torch.bfloat16) * 0.05)(Bsz, L, D)), 'log_A_real': _w((lambda *s: torch.randn(*s, dtype=torch.bfloat16) * 3.2)(D, N) * 0.5), 'A_imag': _w((lambda *s: torch.randn(*s, dtype=torch.bfloat16) * 0.1)(D, N) * 3.14), 'C_real': _w((lambda *s: torch.randn(*s, dtype=torch.bfloat16) * 0.4)(D, N) / N ** 0.5), 'C_imag': _w((lambda *s: torch.randn(*s, dtype=torch.bfloat16) * 0.4)(D, N) / N ** 0.5), 'log_dt': _w((lambda *s: torch.randn(*s, dtype=torch.bfloat16) * 0.1)(D) * 0.5 - 4.0), 'D_skip': _w((lambda *s: torch.randn(*s, dtype=torch.bfloat16) * 0.1)(D))}
    _A_in = _A_setup()

    def _B_setup():
        B, S, D, F = (1, 2048, 640, 1536)
        return {'x': _w((lambda *s: torch.randn(*s, dtype=torch.bfloat16) * 0.05)(B, S, D)), 'w_gate': _w((lambda *s: torch.randn(*s, dtype=torch.bfloat16) * 0.05)(D, F)), 'w_up': _w((lambda *s: torch.randn(*s, dtype=torch.bfloat16) * 0.05)(D, F)), 'w_down': _w((lambda *s: torch.randn(*s, dtype=torch.bfloat16) * 0.05)(F, D))}
    _B_in = _B_setup()
    return {'A_u': _A_in['u'], 'A_log_A_real': _A_in['log_A_real'], 'A_A_imag': _A_in['A_imag'], 'A_C_real': _A_in['C_real'], 'A_C_imag': _A_in['C_imag'], 'A_log_dt': _A_in['log_dt'], 'A_D_skip': _A_in['D_skip'], 'B_x': _B_in['x'], 'B_w_gate': _B_in['w_gate'], 'B_w_up': _B_in['w_up'], 'B_w_down': _B_in['w_down'], 'c': _w((lambda *s: torch.randn(*s, dtype=torch.bfloat16) * 0.2)(1, 640) * 8.0), 'w_mod': _w((lambda *s: torch.randn(*s, dtype=torch.bfloat16) * 0.2)(640, 6 * 640) * 640 ** (-0.5) * 8.0)}

def reference(A_u, A_log_A_real, A_A_imag, A_C_real, A_C_imag, A_log_dt, A_D_skip, B_x, B_w_gate, B_w_up, B_w_down, c, w_mod):

    def _A_ref(u, log_A_real, A_imag, C_real, C_imag, log_dt, D_skip):
        L = u.shape[1]
        dt = torch.exp(log_dt)
        A = -torch.exp(log_A_real) + 1j * A_imag
        C = (C_real + 1j * C_imag) * dt[:, None]
        pos = (lambda x, dt: x.to(dt))(torch.arange(L), log_dt.dtype)
        P = torch.exp((A * dt[:, None])[:, :, None] * pos[None, None, :])
        K = 2.0 * torch.einsum('dn,dnl->dl', C, P).real
        L2 = 2 * L
        u_t = (lambda x, *d: x.permute(*d))(u, 0, 2, 1)
        Kf = (lambda x, *a, **k: torch.fft.rfft(x.float(), *a, **k))(K, L2)
        Uf = (lambda x, *a, **k: torch.fft.rfft(x.float(), *a, **k))(u_t, L2)
        y = (lambda x, *a, **k: torch.fft.irfft(x, *a, **k).to(torch.bfloat16))(Uf * Kf[None, :, :], L2)[:, :, :L]
        y = (lambda x, *d: x.permute(*d))(y, 0, 2, 1)
        return y + u * D_skip[None, None, :]

    def _B_ref(x, w_gate, w_up, w_down):
        return _gelu(x @ w_gate) * (x @ w_up) @ w_down
    x = A_u
    mod = (_silu(c) @ w_mod).reshape(c.shape[0], 6, 1, -1)
    sa, ca, ga, sb, cb, gb = (mod[:, 0].clone(), mod[:, 1].clone(), mod[:, 2].clone(), mod[:, 3].clone(), mod[:, 4].clone(), mod[:, 5].clone())
    h = _layernorm(x, axis=-1) * (1 + ca) + sa
    x = x + ga * _A_ref(h, A_log_A_real, A_A_imag, A_C_real, A_C_imag, A_log_dt, A_D_skip)
    h = _layernorm(x, axis=-1) * (1 + cb) + sb
    x = x + gb * _B_ref(h, B_w_gate, B_w_up, B_w_down)
    return x
```

```python
import struct
class Asm:
    def __init__(self):
        self.lines = []
        self.uid = 0
    def __call__(self, s=''):
        for l in s.split('\n'):
            self.lines.append(l)
    def label(self, base='L'):
        self.uid += 1
        return f'{base}_{self.uid}'
    def text(self): return '\n'.join(self.lines) + '\n'

def f32(x):
    return '0x%08x' % struct.unpack('<I', struct.pack('<f', x))[0]

def kernel_begin(a, name):
    a(f'.globl {name}')
    a('.p2align 8')
    a(f'.type {name},@function')
    a(f'{name}:')

def descriptor(a, name, vgpr, sgpr=102, accum=None, wgy=False):
    acc = accum if accum is not None else min(256, (vgpr + 3) // 4 * 4)
    a('.section .rodata,"a"')
    a('.p2align 6')
    a(f'.amdhsa_kernel {name}')
    a(f'  .amdhsa_next_free_vgpr {vgpr}')
    a(f'  .amdhsa_next_free_sgpr {sgpr}')
    a(f'  .amdhsa_accum_offset {acc}')
    a('  .amdhsa_group_segment_fixed_size 0')
    a('  .amdhsa_kernarg_size 128')
    a('  .amdhsa_user_sgpr_count 2')
    a('  .amdhsa_user_sgpr_kernarg_segment_ptr 1')
    a('  .amdhsa_system_sgpr_workgroup_id_x 1')
    if wgy: a('  .amdhsa_system_sgpr_workgroup_id_y 1')
    a('  .amdhsa_float_denorm_mode_32 3')
    a('.end_amdhsa_kernel')
    a('.text')

def vr(b, n=1): return f'v{b}' if n == 1 else f'v[{b}:{b+n-1}]'
def ar(b, n=1): return f'a{b}' if n == 1 else f'a[{b}:{b+n-1}]'
def sr(b, n=1): return f's{b}' if n == 1 else f's[{b}:{b+n-1}]'

def srd(a, dst, base, size, off=0):
    if off:
        a(f's_add_u32 s{dst}, s{base}, {hex(off)}')
        a(f's_addc_u32 s{dst+1}, s{base+1}, 0')
    else:
        a(f's_mov_b32 s{dst}, s{base}')
        a(f's_mov_b32 s{dst+1}, s{base+1}')
    a(f's_mov_b32 s{dst+2}, {hex(size)}')
    a(f's_mov_b32 s{dst+3}, 0x20000')

def wave_id(a, sdst, vtmp):
    a(f'v_lshrrev_b32 v{vtmp}, 6, v0')
    a('s_nop 0')
    a(f'v_readfirstlane_b32 s{sdst}, v{vtmp}')

def bf16r(a, v, t):
    a(f'v_cvt_pk_bf16_f32 v{t}, v{v}, v{v}')
    a(f'v_lshlrev_b32 v{v}, 16, v{t}')
```

```python
from asmgen import *
import layout as Y
LOG2E = 1.4426950408889634
K1_LDS = 27648
K1_GRID = 1152

def cexp(a, dst, p, zr, zi, t0, t1):
    if p == 1:
        a(f'v_exp_f32 v{t0}, v{zr}')
        a(f'v_fract_f32 v{t1}, v{zi}')
    else:
        a(f'v_mul_f32 v{t0}, {f32(float(p))}, v{zr}')
        a(f'v_mul_f32 v{t1}, {f32(float(p))}, v{zi}')
        a(f'v_exp_f32 v{t0}, v{t0}')
        a(f'v_fract_f32 v{t1}, v{t1}')
    a(f'v_cos_f32 v{dst}, v{t1}')
    a(f'v_sin_f32 v{dst+1}, v{t1}')
    a('s_nop 0')
    a(f'v_mul_f32 v{dst}, v{dst}, v{t0}')
    a(f'v_mul_f32 v{dst+1}, v{dst+1}, v{t0}')

def cmul(a, d, x, y):
    assert d != x and d != y and d % 2 == 0 and x % 2 == 0 and y % 2 == 0
    a(f'v_pk_mul_f32 v[{d}:{d+1}], v[{x}:{x+1}], v[{y}:{y+1}] op_sel:[0,0] op_sel_hi:[1,0]')
    a(f'v_pk_fma_f32 v[{d}:{d+1}], v[{x}:{x+1}], v[{y}:{y+1}], v[{d}:{d+1}] op_sel:[1,1,0] op_sel_hi:[0,1,1] neg_lo:[1,0,0]')

def role_k(a, stf):
    RS = 288
    AOFF = 16 * RS
    WREG = 32 * RS
    a('k1_roleK:')
    wave_id(a, 3, 1)
    a('s_load_dwordx4 s[4:7], s[0:1], 8')
    a('s_load_dwordx4 s[8:11], s[0:1], 24')
    a('s_load_dwordx2 s[12:13], s[0:1], 40')
    a('s_load_dwordx2 s[14:15], s[0:1], 120')
    a('s_cmp_eq_u32 s3, 3')
    a('s_cbranch_scc1 k1_exit')
    a('s_mul_i32 s40, s2, 192')
    a('v_add_u32 v1, s40, v0')
    a('v_lshlrev_b32 v1, 1, v1')
    a('s_lshl_b32 s41, s2, 1')
    a('v_mov_b32 v2, s41')
    a('s_waitcnt lgkmcnt(0)')
    srd(a, 16, 4, 640*192*2); srd(a, 20, 6, 640*192*2); srd(a, 24, 8, 640*192*2); srd(a, 28, 10, 640*192*2)
    srd(a, 32, 12, 640*2); srd(a, 36, 14, Y.SZ['KT'], Y.KT)
    a('buffer_load_ushort v3, v2, s[32:35], 0 offen')
    a('buffer_load_ushort v4, v1, s[16:19], 0 offen')
    a('buffer_load_ushort v5, v1, s[20:23], 0 offen')
    a('buffer_load_ushort v10, v1, s[24:27], 0 offen')
    a('buffer_load_ushort v11, v1, s[28:31], 0 offen')
    a(f's_mul_i32 s42, s3, {WREG}')
    a('v_and_b32 v6, 63, v0')
    a('v_and_b32 v7, 15, v6')
    a('v_lshrrev_b32 v8, 4, v6')
    a(f'v_mul_u32_u24 v9, {RS}, v7')
    a('v_lshl_add_u32 v9, v8, 4, v9')
    a('s_waitcnt vmcnt(0)')
    a('v_lshlrev_b32 v1, 2, v6')
    a('v_add_u32 v1, s42, v1')
    a('v_add_u32 v2, s42, v9')
    ZR, ZI, T0, T1, W = 4, 5, 6, 7, 8
    a('v_lshlrev_b32 v3, 16, v3')
    a('v_lshlrev_b32 v4, 16, v4')
    a('v_lshlrev_b32 v5, 16, v5')
    a('v_lshlrev_b32 v10, 16, v10')
    a('v_lshlrev_b32 v11, 16, v11')
    a(f'v_mul_f32 v3, {f32(LOG2E)}, v3')
    a(f'v_mul_f32 v4, {f32(LOG2E)}, v4')
    a('v_exp_f32 v3, v3')
    a('v_exp_f32 v4, v4')
    a('s_nop 0')
    bf16r(a, 3, T0); bf16r(a, 4, T0)
    a('v_mul_f32 v4, v4, v3')
    a('v_mul_f32 v5, v5, v3')
    a(f'v_mul_f32 v4, {f32(-LOG2E)}, v4')
    a(f'v_mul_f32 v5, {f32(1/(2*3.141592653589793))}, v5')
    A = lambda k: 10 + 2*k
    B0, B1 = 42, 44
    PK = 46
    BF, AF, ACC = 48, 64, 80
    def wr_a(row, reg):
        a(f'v_cvt_pk_f16_f32 v{PK + (row & 1)}, v{reg}, -v{reg+1}')
        a(f'ds_write_b32 v1, v{PK + (row & 1)} offset:{AOFF + row*RS}')
    def wr_b(row, reg):
        a(f'v_cvt_pk_f16_f32 v{PK + (row & 1)}, v{reg}, v{reg+1}')
        a(f'ds_write_b32 v1, v{PK + (row & 1)} offset:{row*RS}')
    def rd_a():
        for ks in range(4):
            a(f'ds_read_b128 v[{AF+4*ks}:{AF+4*ks+3}], v2 offset:{AOFF + 64*ks}')
    def mm(t):
        for ks in range(4):
            c = '0' if ks == 0 else f'v[{ACC+4*t}:{ACC+4*t+3}]'
            a(f'v_mfma_f32_16x16x32_f16 v[{ACC+4*t}:{ACC+4*t+3}], v[{AF+4*ks}:{AF+4*ks+3}], v[{BF+4*ks}:{BF+4*ks+3}], {c}')
    cexp(a, W, 8, ZR, ZI, T0, T1)
    a(f'v_mov_b32 v{PK}, 0x3c00')
    a(f'ds_write_b32 v1, v{PK} offset:0')
    wr_b(1, W)
    cur, nxt = W, B0
    for j in range(2, 16):
        cmul(a, nxt, cur, W)
        wr_b(j, nxt)
        cur = nxt
        nxt = B1 if nxt == B0 else B0
    for ks in range(4):
        a(f'ds_read_b128 v[{BF+4*ks}:{BF+4*ks+3}], v2 offset:{64*ks}')
    cexp(a, W, 1, ZR, ZI, T0, T1)
    wr_a(0, A(0))
    for i in range(1, 8):
        cmul(a, A(i), A(i-1), W); wr_a(i, A(i))
    cexp(a, W, 128, ZR, ZI, T0, T1)
    for i in range(8):
        cmul(a, A(8+i), A(i), W); wr_a(8+i, A(8+i))
    rd_a()
    cexp(a, W, 256, ZR, ZI, T0, T1)
    a('s_waitcnt lgkmcnt(0)')
    mm(0)
    tmp = [B0, B1]
    def prod(row, src, keep=None):
        dst = keep if keep is not None else tmp[row & 1]
        cmul(a, dst, src, W); wr_a(row, dst)
    prod(0, A(0), A(1)); prod(1, A(2)); prod(2, A(4), A(3)); prod(3, A(6))
    prod(4, A(8), A(5)); prod(5, A(10)); prod(6, A(12), A(7)); prod(7, A(14))
    cexp(a, W, 512, ZR, ZI, T0, T1)
    prod(8, A(0), A(9)); prod(9, A(4)); prod(10, A(8), A(11)); prod(11, A(12))
    prod(12, A(1), A(13)); prod(13, A(3)); prod(14, A(5), A(15)); prod(15, A(7))
    rd_a()
    cexp(a, W, 1024, ZR, ZI, T0, T1)
    a('s_waitcnt lgkmcnt(0)')
    mm(1)
    prod(0, A(0), A(2)); prod(1, A(8)); prod(2, A(1)); prod(3, A(5))
    prod(4, A(9)); prod(5, A(11)); prod(6, A(13)); prod(7, A(15))
    prod(8, A(2))
    rd_a()
    a('v_and_b32 v6, 15, v0')
    a('v_bfe_u32 v7, v0, 4, 2')
    a('v_and_b32 v10, 1, v7')
    a('v_lshlrev_b32 v10, 2, v10')
    a('v_lshrrev_b32 v11, 1, v7')
    a('v_lshl_add_u32 v10, v11, 7, v10')
    a('v_lshl_add_u32 v10, v6, 3, v10')
    a('v_lshlrev_b32 v10, 2, v10')
    a('v_add_u32 v10, s42, v10')
    a('v_cmp_gt_u32 vcc, 2, v7')
    a('v_lshlrev_b32 v12, 2, v6')
    a('v_lshlrev_b32 v13, 1, v6')
    a('v_mov_b32 v14, 32')
    a('v_cndmask_b32 v12, v13, v12, vcc')
    a('v_mov_b32 v15, 2')
    a('v_cndmask_b32 v14, v14, v15, vcc')
    a('v_lshl_add_u32 v12, v7, 6, v12')
    a('v_add_u32 v12, 256, v12')
    a('v_add_u32 v13, v12, v14')
    a('v_lshlrev_b32 v12, 2, v12')
    a('v_lshlrev_b32 v13, 2, v13')
    a('v_add_u32 v12, s42, v12')
    a('v_add_u32 v13, s42, v13')
    a('v_lshl_add_u32 v14, v7, 6, v6')
    a('v_add_u32 v14, 512, v14')
    a('v_lshlrev_b32 v14, 2, v14')
    a('v_add_u32 v14, s42, v14')
    a('s_waitcnt lgkmcnt(0)')
    mm(2)
    a(f'ds_write_b128 v10, v[{ACC}:{ACC+3}]')
    a(f'ds_write_b64 v12, v[{ACC+4}:{ACC+5}]')
    a(f'ds_write_b64 v13, v[{ACC+6}:{ACC+7}]')
    a('s_nop 7')
    for r in range(4):
        a(f'ds_write_b32 v14, v{ACC+8+r} offset:{64*r}')
    a('s_waitcnt lgkmcnt(0)')
    a('s_barrier')
    a('v_cmp_gt_u32 vcc, 161, v0')
    a('s_and_saveexec_b64 s[44:45], vcc')
    a('s_cbranch_execz k1_exit')
    a('v_lshlrev_b32 v1, 4, v0')
    a(f'ds_read_b128 v[10:13], v1 offset:0')
    a(f'ds_read_b128 v[14:17], v1 offset:{WREG}')
    a(f'ds_read_b128 v[18:21], v1 offset:{2*WREG}')
    a(f's_mul_i32 s40, s2, {Y.KT_STRIDE}')
    a('v_lshlrev_b32 v2, 3, v0')
    a('v_add_u32 v2, s40, v2')
    a('s_waitcnt lgkmcnt(0)')
    for r in range(4):
        a(f'v_add_f32 v{10+r}, v{10+r}, v{14+r}')
    for r in range(4):
        a(f'v_add_f32 v{10+r}, v{10+r}, v{18+r}')
    a('v_cvt_pk_f16_f32 v10, v10, v11')
    a('v_cvt_pk_f16_f32 v11, v12, v13')
    a(f'buffer_store_dwordx2 v[10:11], v2, s[36:39], 0 offen {stf}')
    a('s_endpgm')

def role_d(a, stf):
    a('; ---- role D: Wd fragment prep, q = s2-640')
    a('k1_roleD:')
    RS = 672
    wave_id(a, 3, 1)
    a('s_load_dwordx2 s[4:5], s[0:1], 80')
    a('s_load_dwordx2 s[14:15], s[0:1], 120')
    a('s_sub_u32 s40, s2, 640')
    a('s_lshr_b32 s41, s40, 1')
    a('s_and_b32 s42, s40, 1')
    a('s_lshr_b32 s43, s41, 3')
    a('s_lshl_b32 s43, s43, 8')
    a('s_and_b32 s44, s41, 7')
    a('s_add_u32 s43, s43, s44')
    a('s_mul_i32 s43, s43, 1280')
    a('s_mul_i32 s44, s42, 640')
    a('s_add_u32 s43, s43, s44')
    a('v_and_b32 v2, 63, v0')
    a('s_waitcnt lgkmcnt(0)')
    srd(a, 16, 4, 1536*1280); srd(a, 20, 14, Y.SZ['WDP'], Y.WDP)
    for k in range(6):
        skip = a.label('k1d_skip')
        if k == 5:
            a('s_cmp_lg_u32 s3, 0')
            a(f's_cbranch_scc1 {skip}')
        a(f's_lshl_b32 s45, s3, 6')
        a(f's_add_u32 s45, s45, {256*k}')
        a('v_add_u32 v3, s45, v2')
        a('v_mul_u32_u24 v4, 1561, v3')
        a('v_lshrrev_b32 v4, 16, v4')
        a('v_mul_u32_u24 v5, 42, v4')
        a('v_sub_u32 v5, v3, v5')
        a('v_and_b32 v6, 3, v4')
        a('v_bfe_u32 v7, v4, 2, 1')
        a('v_lshl_add_u32 v6, v7, 4, v6')
        a('v_bfe_u32 v7, v4, 4, 1')
        a('v_lshl_add_u32 v6, v7, 3, v6')
        a('v_bfe_u32 v7, v4, 3, 1')
        a('v_lshl_add_u32 v6, v7, 2, v6')
        a('v_mul_u32_u24 v6, 10240, v6')
        a('v_lshl_add_u32 v6, v5, 4, v6')
        a('v_cmp_gt_u32 vcc, 40, v5')
        a('v_mov_b32 v7, 0x7ff00000')
        a('s_lshl_b32 s46, s45, 4')
        a('v_cndmask_b32 v6, v7, v6, vcc')
        a('s_mov_b32 m0, s46')
        a('s_nop 0')
        a('buffer_load_dwordx4 v6, s[16:19], s43 offen lds')
        if k == 5: a(f'{skip}:')
    a('v_lshrrev_b32 v3, 4, v2')
    a('v_bfe_u32 v4, v2, 2, 2')
    a('v_and_b32 v5, 3, v2')
    a('v_lshrrev_b32 v6, 1, v3')
    a('v_lshl_add_u32 v4, v6, 3, v4')
    a('v_and_b32 v6, 1, v3')
    a('v_lshl_add_u32 v4, v6, 2, v4')
    a(f'v_mul_u32_u24 v4, {RS}, v4')
    a('v_lshl_add_u32 v4, v5, 3, v4')
    a('s_mul_i32 s45, s3, 160')
    a('v_add_u32 v4, s45, v4')
    a('s_lshl_b32 s45, s42, 2')
    a('s_add_u32 s45, s45, s3')
    a('s_mul_i32 s45, s45, 48')
    a('s_add_u32 s45, s45, s41')
    a('s_mul_i32 s45, s45, 5120')
    a('v_lshlrev_b32 v5, 4, v2')
    a('v_add_u32 v5, s45, v5')
    a('s_movk_i32 s47, 4096')
    a('s_waitcnt vmcnt(0)')
    a('s_barrier')
    for m in range(5):
        a(f'ds_read_b64_tr_b16 v[{8+4*m}:{9+4*m}], v4 offset:{32*m}')
        a(f'ds_read_b64_tr_b16 v[{10+4*m}:{11+4*m}], v4 offset:{32*m + 16*RS}')
    for m in range(5):
        a(f's_waitcnt lgkmcnt({8-2*m})')
        if m < 4: a(f'buffer_store_dwordx4 v[{8+4*m}:{11+4*m}], v5, s[20:23], 0 offen offset:{1024*m} {stf}')
        else: a(f'buffer_store_dwordx4 v[{8+4*m}:{11+4*m}], v5, s[20:23], s47 offen {stf}')
    a('s_endpgm')

def role_g(a, stf):
    a('; ---- role G: mod GEMV')
    a('k1_roleG:')
    a('s_load_dwordx4 s[4:7], s[0:1], 88')
    a('s_load_dwordx2 s[14:15], s[0:1], 120')
    a('s_sub_u32 s40, s2, 736')
    a('s_lshr_b32 s41, s40, 4')
    a('s_lshl_b32 s41, s41, 4')
    a('s_and_b32 s42, s40, 7')
    a('s_lshl_b32 s42, s42, 1')
    a('s_add_u32 s41, s41, s42')
    a('s_bfe_u32 s42, s40, 0x10003')
    a('s_add_u32 s41, s41, s42')
    a('s_cmp_ge_u32 s41, 120')
    a('s_cbranch_scc1 k1_exit')
    a('v_and_b32 v1, 3, v0')
    a('v_lshrrev_b32 v2, 2, v0')
    a('v_lshlrev_b32 v3, 1, v2')
    a('v_mul_u32_u24 v4, 7680, v2')
    a('v_lshl_add_u32 v4, v1, 4, v4')
    a('s_lshl_b32 s42, s41, 6')
    a('s_waitcnt lgkmcnt(0)')
    srd(a, 16, 4, 1280); srd(a, 20, 6, 640*7680); srd(a, 24, 14, Y.SZ['MOD'], Y.MOD)
    for i in range(10):
        a(f'buffer_load_ushort v{10+i}, v3, s[16:19], 0 offen offset:{128*i}')
    for i in range(10):
        a(f'buffer_load_dwordx4 v[{20+4*i}:{23+4*i}], v4, s[20:23], s42 offen')
        if i < 9: a(f's_add_u32 s42, s42, {64*7680}')
    a('s_waitcnt vmcnt(10)')
    for i in range(10):
        a(f'v_lshlrev_b32 v{10+i}, 16, v{10+i}')
    for i in range(10):
        a(f'v_mul_f32 v{60+i}, {f32(-LOG2E)}, v{10+i}')
    for i in range(10):
        a(f'v_exp_f32 v{60+i}, v{60+i}')
    for i in range(10):
        a(f'v_add_f32 v{60+i}, 1.0, v{60+i}')
    for i in range(10):
        a(f'v_rcp_f32 v{60+i}, v{60+i}')
    for i in range(10):
        a(f'v_mul_f32 v{10+i}, v{10+i}, v{60+i}')
    for i in range(10):
        a(f'v_cvt_pk_bf16_f32 v{60+i}, v{10+i}, v{10+i}')
    for i in range(10):
        a(f'v_lshlrev_b32 v{10+i}, 16, v{60+i}')
    ACC = 60
    for c in range(8): a(f'v_mov_b32 v{ACC+c}, 0')
    for i in range(10):
        a(f's_waitcnt vmcnt({9-i})')
        for k in range(4):
            a(f'v_lshlrev_b32 v70, 16, v{20+4*i+k}')
            a(f'v_and_b32 v71, 0xffff0000, v{20+4*i+k}')
            a(f'v_fmac_f32 v{ACC+2*k}, v{10+i}, v70')
            a(f'v_fmac_f32 v{ACC+2*k+1}, v{10+i}, v71')
    a('s_nop 1')
    for c in range(8):
        a(f'v_add_f32_dpp v{ACC+c}, v{ACC+c}, v{ACC+c} row_shr:4 row_mask:0xf bank_mask:0xf bound_ctrl:0')
    for c in range(8):
        a(f'v_add_f32_dpp v{ACC+c}, v{ACC+c}, v{ACC+c} row_shr:8 row_mask:0xf bank_mask:0xf bound_ctrl:0')
    a('v_lshrrev_b32 v2, 4, v0')
    a('v_lshlrev_b32 v2, 7, v2')
    a('v_lshl_add_u32 v2, v1, 5, v2')
    a('v_and_b32 v3, 15, v0')
    a('v_cmp_le_u32 vcc, 12, v3')
    a('s_and_saveexec_b64 s[44:45], vcc')
    a(f'ds_write_b128 v2, v[{ACC}:{ACC+3}]')
    a(f'ds_write_b128 v2, v[{ACC+4}:{ACC+7}] offset:16')
    a('s_mov_b64 exec, s[44:45]')
    a('s_waitcnt lgkmcnt(0)')
    a('s_barrier')
    a('v_cmp_gt_u32 vcc, 32, v0')
    a('s_and_saveexec_b64 s[44:45], vcc')
    a('s_cbranch_execz k1_exit')
    a('v_lshlrev_b32 v2, 2, v0')
    for p in range(16):
        a(f'ds_read_b32 v{10+p}, v2 offset:{128*p}')
    a('s_lshl_b32 s42, s41, 7')
    a('v_add_u32 v3, s42, v2')
    a('s_waitcnt lgkmcnt(0)')
    for st in (8, 4, 2, 1):
        for p in range(st):
            a(f'v_add_f32 v{10+p}, v{10+p}, v{10+p+st}')
    bf16r(a, 10, 11)
    a(f'buffer_store_dword v10, v3, s[24:27], 0 offen {stf}')
    a('s_endpgm')

def role_s(a, stf):
    a('; ---- role S: LN1 stats')
    a('k1_roleS:')
    a('s_load_dwordx2 s[4:5], s[0:1], 0')
    a('s_load_dwordx2 s[14:15], s[0:1], 120')
    a('s_sub_u32 s40, s2, 864')
    a('s_lshl_b32 s40, s40, 4')
    a('v_lshrrev_b32 v1, 4, v0')
    a('v_add_u32 v1, s40, v1')
    a('v_and_b32 v2, 15, v0')
    a('v_mul_u32_u24 v3, 1280, v1')
    a('v_lshl_add_u32 v3, v2, 4, v3')
    a('s_waitcnt lgkmcnt(0)')
    srd(a, 16, 4, 2048*1280); srd(a, 20, 14, Y.SZ['ST1'], Y.ST1)
    for i in range(5):
        a(f'buffer_load_dwordx4 v[{4+4*i}:{7+4*i}], v3, s[16:19], 0 offen offset:{256*i}')
    X = 24
    for i in range(5):
        a(f's_waitcnt vmcnt({4-i})')
        for k in range(4):
            a(f'v_lshlrev_b32 v{X+8*i+2*k}, 16, v{4+4*i+k}')
            a(f'v_and_b32 v{X+8*i+2*k+1}, 0xffff0000, v{4+4*i+k}')
    for c in range(4): a(f'v_add_f32 v{4+c}, v{X+c}, v{X+4+c}')
    for i in range(2, 10):
        for c in range(4): a(f'v_add_f32 v{4+c}, v{4+c}, v{X+4*i+c}')
    a('v_add_f32 v4, v4, v5')
    a('v_add_f32 v6, v6, v7')
    a('v_add_f32 v4, v4, v6')
    for sh in (8, 4, 2, 1):
        a('s_nop 1')
        a(f'v_add_f32_dpp v4, v4, v4 row_ror:{sh} row_mask:0xf bank_mask:0xf')
    a(f'v_mul_f32 v4, {f32(1/640)}, v4')
    for i in range(40): a(f'v_sub_f32 v{X+i}, v{X+i}, v4')
    for c in range(4): a(f'v_mul_f32 v{8+c}, v{X+c}, v{X+c}')
    for i in range(1, 10):
        for c in range(4): a(f'v_fmac_f32 v{8+c}, v{X+4*i+c}, v{X+4*i+c}')
    a('v_add_f32 v8, v8, v9')
    a('v_add_f32 v10, v10, v11')
    a('v_add_f32 v8, v8, v10')
    for sh in (8, 4, 2, 1):
        a('s_nop 1')
        a(f'v_add_f32_dpp v8, v8, v8 row_ror:{sh} row_mask:0xf bank_mask:0xf')
    a(f'v_mov_b32 v9, {f32(1e-5)}')
    a(f'v_fmac_f32 v9, {f32(1/640)}, v8')
    a('v_rsq_f32 v8, v9')
    a('v_lshlrev_b32 v3, 3, v1')
    a('v_mul_f32 v9, v8, v4')
    a('v_sub_f32 v9, 0, v9')
    a('v_cmp_eq_u32 vcc, 0, v2')
    a('s_and_saveexec_b64 s[44:45], vcc')
    a('s_cbranch_execz k1_exit')
    a(f'buffer_store_dwordx2 v[8:9], v3, s[20:23], 0 offen {stf}')
    a('s_endpgm')

def role_t(a, stf):
    a('; ---- role T: transpose x -> XT')
    a('k1_roleT:')
    wave_id(a, 3, 1)
    a('s_load_dwordx2 s[4:5], s[0:1], 0')
    a('s_load_dwordx2 s[14:15], s[0:1], 120')
    a('s_sub_u32 s40, s2, 992')
    a('s_mul_i32 s41, s40, 13108')
    a('s_lshr_b32 s41, s41, 16')
    a('s_mul_i32 s42, s41, 5')
    a('s_sub_u32 s42, s40, s42')
    a('v_and_b32 v2, 63, v0')
    a('v_lshrrev_b32 v3, 4, v2')
    a('v_and_b32 v4, 15, v2')
    a('s_and_b32 s43, s3, 1')
    a('s_lshl_b32 s43, s43, 3')
    a('v_or_b32 v5, s43, v3')
    a('v_xor_b32 v5, v5, v4')
    a('v_xor_b32 v6, 4, v5')
    a('v_mul_u32_u24 v3, 1280, v3')
    a('v_lshl_add_u32 v5, v5, 4, v3')
    a('v_lshl_add_u32 v6, v6, 4, v3')
    a('s_lshl_b32 s43, s41, 6')
    a('s_lshl_b32 s44, s3, 4')
    a('s_add_u32 s43, s43, s44')
    a('s_mul_i32 s43, s43, 1280')
    a('s_lshl_b32 s45, s42, 8')
    a('s_add_u32 s43, s43, s45')
    a('s_lshl_b32 s44, s44, 8')
    a('s_waitcnt lgkmcnt(0)')
    srd(a, 16, 4, 2048*1280); srd(a, 20, 14, Y.SZ['XT'], Y.XT)
    for i in range(4):
        a('s_mov_b32 m0, s44')
        a('s_add_u32 s44, s44, 1024')
        a(f'buffer_load_dwordx4 v{5 if i < 2 else 6}, s[16:19], s43 offen lds')
        a(f's_add_u32 s43, s43, {4*1280}')
    a('v_lshrrev_b32 v3, 4, v2')
    a('v_bfe_u32 v4, v2, 2, 2')
    a('v_bfe_u32 v5, v2, 1, 1')
    a('v_and_b32 v6, 1, v2')
    a('v_lshl_add_u32 v7, v5, 3, v4')
    a('v_lshl_add_u32 v7, v3, 4, v7')
    a('v_lshl_add_u32 v8, v5, 2, v4')
    a('v_and_b32 v9, 1, v3')
    a('v_lshl_add_u32 v8, v9, 3, v8')
    a('s_lshl_b32 s45, s3, 2')
    a('v_xor_b32 v8, s45, v8')
    a('v_lshlrev_b32 v8, 4, v8')
    a('v_lshl_add_u32 v8, v7, 8, v8')
    a('v_lshl_add_u32 v8, v6, 3, v8')
    for u in range(1, 4): a(f'v_xor_b32 v{8+u}, {u<<4}, v8')
    a('v_and_b32 v4, 7, v2')
    a('v_lshlrev_b32 v4, 12, v4')
    a('v_bfe_u32 v5, v2, 3, 1')
    a('v_lshl_add_u32 v5, v3, 1, v5')
    a('v_lshl_add_u32 v4, v5, 4, v4')
    a('s_lshl_b32 s45, s42, 7')
    a('s_lshl_b32 s46, s3, 5')
    a('s_add_u32 s45, s45, s46')
    a('s_lshl_b32 s45, s45, 12')
    a('s_lshl_b32 s46, s41, 7')
    a('s_add_u32 s45, s45, s46')
    a('s_waitcnt vmcnt(0)')
    a('s_barrier')
    for u in range(4):
        a(f'ds_read_b64_tr_b16 v[{12+4*u}:{13+4*u}], v{8+u}')
        a(f'ds_read_b64_tr_b16 v[{14+4*u}:{15+4*u}], v{8+u} offset:1024')
    for u in range(4):
        a(f's_waitcnt lgkmcnt({6-2*u})')
        a(f'buffer_store_dwordx4 v[{12+4*u}:{15+4*u}], v4, s[20:23], s45 offen {stf}')
        if u < 3: a(f's_add_u32 s45, s45, {8*4096}')
    a('s_endpgm')

def k1(a, stf=''):
    kernel_begin(a, 'k1_kernel')
    a('s_cmp_lt_u32 s2, 640')
    a('s_cbranch_scc1 k1_roleK')
    a('s_cmp_lt_u32 s2, 736')
    a('s_cbranch_scc1 k1_roleD')
    a('s_cmp_lt_u32 s2, 864')
    a('s_cbranch_scc1 k1_roleG')
    a('s_cmp_lt_u32 s2, 992')
    a('s_cbranch_scc1 k1_roleS')
    a(f's_cmp_lt_u32 s2, {K1_GRID}')
    a('s_cbranch_scc1 k1_roleT')
    a('k1_exit:')
    a('s_endpgm')
    role_k(a, stf); role_d(a, stf); role_g(a, stf); role_s(a, stf); role_t(a, stf)

if __name__ == '__main__':
    for q in range(160): assert (q * 13108) >> 16 == q // 5
    for s in range(1344): assert (s * 1561) >> 16 == s // 42
    print('ok')
```

```python
from asmgen import *
import layout as Y
K2_GRID = 768
RBASE = 4160
RSTR = 1152
YBASE = RBASE + 4 * RSTR
YSTR = 10240
K2_LDS = YBASE + 4 * YSTR
K2_VGPR = 128

def role_conv(a, stf):
    a('; ---- conv role: d = s2-128')
    a('k2_conv:')
    wave_id(a, 3, 1)
    a('s_load_dwordx4 s[4:7], s[0:1], 40')
    a('s_load_dwordx2 s[14:15], s[0:1], 120')
    a('s_sub_u32 s40, s2, 128')
    a('s_lshl_b32 s41, s40, 12')
    a(f's_mul_i32 s42, s40, {Y.KT_STRIDE}')
    a('s_lshl_b32 s43, s40, 2')
    a('s_lshl_b32 s44, s40, 1')
    a('s_and_b32 s44, s44, 0xfffffffc')
    a('v_lshlrev_b32 v1, 4, v0')
    a('v_lshlrev_b32 v2, 6, v0')
    a('s_waitcnt lgkmcnt(0)')
    srd(a, 16, 14, Y.SZ['XT'], Y.XT); srd(a, 20, 14, Y.SZ['ST1'], Y.ST1); srd(a, 24, 14, Y.SZ['KT'], Y.KT); srd(a, 28, 14, Y.SZ['X1T'], Y.X1T)
    a('buffer_load_dwordx4 v[4:7], v1, s[16:19], s41 offen')
    for i in range(4):
        a(f'buffer_load_dwordx4 v[{16+4*i}:{19+4*i}], v2, s[20:23], 0 offen offset:{16*i}')
    a('s_load_dword s45, s[14:15], s43')
    a('s_add_u32 s46, s43, 2560')
    a('s_load_dword s46, s[14:15], s46')
    a('s_add_u32 s47, s43, 5120')
    a('s_load_dword s47, s[14:15], s47')
    a('s_load_dword s48, s[4:5], s44')
    a('s_load_dword s49, s[6:7], s44')
    a('v_lshlrev_b32 v3, 3, v0')
    a('v_cvt_f32_u32 v32, v3')
    for i in range(1, 8): a(f'v_add_f32 v{32+i}, {f32(float(i))}, v32')
    for i in range(4): a(f'v_cvt_pk_bf16_f32 v{40+i}, v{32+2*i}, v{33+2*i}')
    a('s_mov_b32 s50, 0xffff7b00')
    for i in range(4):
        a(f'v_and_b32 v{32+2*i}, 0xffff, v{40+i}')
        a(f'v_lshrrev_b32 v{33+2*i}, 16, v{40+i}')
    for i in range(8): a(f'v_lshl_add_u32 v{32+i}, v{32+i}, 1, s50')
    a('v_cmp_gt_u32 vcc, 16, v0')
    a('s_and_saveexec_b64 s[52:53], vcc')
    for i in range(8): a(f'v_add_u32 v{32+i}, {2*i}, v1')
    a('s_mov_b64 exec, s[52:53]')
    for i in range(8):
        a(f'buffer_load_ushort v{56+i}, v{32+i}, s[24:27], s42 offen')
    a('v_mov_b32 v44, 0')
    a('v_lshrrev_b32 v45, 5, v0')
    a(f'v_mul_u32_u24 v45, {RSTR}, v45')
    a('v_and_b32 v46, 31, v0')
    a('v_lshl_add_u32 v45, v46, 2, v45')
    a('v_cmp_gt_u32 vcc, 128, v0')
    a('s_and_saveexec_b64 s[52:53], vcc')
    a(f'ds_write_b32 v45, v44 offset:{RBASE + 1024}')
    a('s_mov_b64 exec, s[52:53]')
    a('v_lshlrev_b32 v45, 2, v0')
    a('v_cmp_gt_u32 vcc, 8, v0')
    a('s_and_saveexec_b64 s[52:53], vcc')
    a('ds_write_b32 v45, v44')
    a('s_mov_b64 exec, s[52:53]')
    a('s_waitcnt lgkmcnt(0)')
    a('s_and_b32 s51, s40, 1')
    a('s_lshl_b32 s51, s51, 4')
    a('s_lshr_b32 s48, s48, s51')
    a('s_lshl_b32 s48, s48, 16')
    a('s_lshr_b32 s49, s49, s51')
    a('s_lshl_b32 s49, s49, 16')
    a('v_mov_b32 v46, s48')
    a(f'v_mul_f32 v46, {f32(1.4426950408889634)}, v46')
    a('v_exp_f32 v46, v46')
    a('v_add_f32 v47, 1.0, s46')
    bf16r(a, 46, 48)
    bf16r(a, 47, 48)
    a('v_add_f32 v3, v46, v46')
    a('s_waitcnt vmcnt(8)')
    for k in range(4):
        a(f'v_lshlrev_b32 v{8+2*k}, 16, v{4+k}')
        a(f'v_and_b32 v{9+2*k}, 0xffff0000, v{4+k}')
    for i in range(8): a(f'v_fma_f32 v{8+i}, v{8+i}, v{16+2*i}, v{17+2*i}')
    for i in range(8): a(f'v_fma_f32 v{8+i}, v{8+i}, v47, s45')
    a('v_lshlrev_b32 v45, 2, v0')
    a(f'v_sub_u32 v45, {RBASE + 1020}, v45')
    for c in range(4):
        a(f'v_cvt_pk_f16_f32 v{48+c}, v{12+c}, v{8+c}')
        a(f'ds_write_b32 v45, v{48+c} offset:{c*RSTR}')
    a('s_waitcnt vmcnt(0)')
    for i in range(4): a(f'v_lshl_or_b32 v{40+i}, v{57+2*i}, 16, v{56+2*i}')
    a('ds_write_b128 v1, v[40:43] offset:32')
    a('v_and_b32 v44, 63, v0')
    a('v_lshrrev_b32 v45, 4, v44')
    a('v_bfe_u32 v46, v44, 2, 2')
    a('v_and_b32 v47, 3, v44')
    a('v_add_u32 v46, v46, v47')
    a('v_lshlrev_b32 v46, 3, v46')
    a('v_lshl_add_u32 v1, v45, 6, v46')
    a('v_add_u32 v1, 8, v1')
    a('v_and_b32 v46, 15, v44')
    a(f's_mul_i32 s51, s3, {RSTR}')
    a(f's_add_u32 s51, s51, {RBASE + 1016 - 896}')
    a('v_lshlrev_b32 v47, 3, v46')
    a('v_sub_u32 v2, s51, v47')
    a('v_lshl_add_u32 v2, v45, 4, v2')
    a('s_waitcnt lgkmcnt(0)')
    a('s_barrier')
    F, ACC, G = 16, 80, 112
    def rdF(w):
        a(f'ds_read_b64_tr_b16 v[{F+4*w}:{F+4*w+1}], v1 offset:{256*w}')
        a(f'ds_read_b64_tr_b16 v[{F+4*w+2}:{F+4*w+3}], v1 offset:{256*w+32}')
    def rdG(s):
        sl = (s + 1) % 4
        a(f'ds_read_b64 v[{G+4*sl}:{G+4*sl+1}], v2 offset:{64*(14-s)}')
        a(f'ds_read_b64 v[{G+4*sl+2}:{G+4*sl+3}], v2 offset:{64*(14-s)+8}')
    rdG(-1)
    for w in range(1, 16, 2): rdF(w)
    for w in (0, 2, 4, 6): rdF(w)
    a('s_waitcnt lgkmcnt(8)')
    started = set()
    def mf(t, w, sl):
        c = f'v[{ACC+4*t}:{ACC+4*t+3}]' if t in started else '0'
        started.add(t)
        a(f'v_mfma_f32_16x16x32_f16 v[{ACC+4*t}:{ACC+4*t+3}], v[{F+4*w}:{F+4*w+3}], v[{G+4*sl}:{G+4*sl+3}], {c}')
    fill = [lambda: rdF(8), lambda: rdF(10), lambda: rdF(12), lambda: rdF(14), lambda: rdG(0), lambda: rdG(1), lambda: rdG(2)]
    for t in range(8):
        mf(t, 2*t + 1, 0)
        if t < 7: fill[t]()
    rdG(3)
    for s in range(0, 15):
        later = min(3, 14 - s)
        a(f's_waitcnt lgkmcnt({2*later})')
        sl = (s + 1) % 4
        for t in range(8):
            w = 2*t - s
            if 0 <= w <= 15: mf(t, w, sl)
        if s + 4 <= 14: rdG(s + 4)
    a('v_and_b32 v1, 15, v0')
    a('v_bfe_u32 v2, v0, 4, 2')
    a('v_mul_u32_u24 v1, 80, v1')
    a('v_lshl_add_u32 v1, v2, 4, v1')
    a(f's_mul_i32 s51, s3, {YSTR}')
    a(f's_add_u32 s51, s51, {YBASE}')
    a('v_add_u32 v1, s51, v1')
    a('s_nop 2')
    for t in range(8):
        a(f'ds_write_b128 v1, v[{ACC+4*t}:{ACC+4*t+3}] offset:{1280*t}')
    a('v_lshrrev_b32 v1, 1, v0')
    a('v_mul_u32_u24 v1, 80, v1')
    a('v_and_b32 v2, 1, v0')
    a('v_lshl_add_u32 v1, v2, 5, v1')
    a('v_lshlrev_b32 v2, 4, v2')
    a('v_add_u32 v2, v1, v2')
    a('v_subrev_u32 v2, 32, v2')
    for c in range(1, 4):
        for r in range(4): a(f'v_mov_b32 v{16+12*c+r}, 0')
    a('s_waitcnt lgkmcnt(0)')
    a('s_barrier')
    for c in range(4):
        a(f'ds_read_b128 v[{16+12*c+4}:{16+12*c+7}], v1 offset:{YBASE + c*YSTR}')
        a(f'ds_read_b128 v[{16+12*c+8}:{16+12*c+11}], v1 offset:{YBASE + c*YSTR + 16}')
    a('v_cmp_lt_u32 vcc, 0, v0')
    a('s_and_saveexec_b64 s[52:53], vcc')
    for c in range(1, 4):
        a(f'ds_read_b128 v[{16+12*c}:{16+12*c+3}], v2 offset:{YBASE + c*YSTR}')
    a('s_mov_b64 exec, s[52:53]')
    a('v_lshlrev_b32 v1, 4, v0')
    a('s_waitcnt lgkmcnt(0)')
    for i in range(8):
        a(f'v_add_f32 v{64+i}, v{16+4+i}, v{16+12+4+i-1}')
    for c in range(2, 4):
        for i in range(8):
            a(f'v_add_f32 v{64+i}, v{64+i}, v{16+12*c+4+i-c}')
    for i in range(8): a(f'v_mul_f32 v{64+i}, v{64+i}, v3')
    for i in range(8): a(f'v_fma_f32 v{64+i}, v{8+i}, s49, v{64+i}')
    for k in range(4):
        a(f'v_lshlrev_b32 v{72+2*k}, 16, v{4+k}')
        a(f'v_and_b32 v{73+2*k}, 0xffff0000, v{4+k}')
    for i in range(8): a(f'v_fma_f32 v{64+i}, v{64+i}, s47, v{72+i}')
    for k in range(4): a(f'v_cvt_pk_bf16_f32 v{72+k}, v{64+2*k}, v{65+2*k}')
    a(f'buffer_store_dwordx4 v[72:75], v1, s[28:31], s41 offen {stf}')
    a('s_endpgm')

def role_p(a, stf):
    a('; ---- role P: W prep, q = s2 (<120)')
    a('k2_prep:')
    wave_id(a, 3, 1)
    a('s_load_dwordx4 s[4:7], s[0:1], 64')
    a('s_load_dwordx2 s[14:15], s[0:1], 120')
    a('s_cmp_ge_u32 s2, 60')
    a('s_cselect_b32 s40, 1, 0')
    a('s_mul_i32 s41, s40, 60')
    a('s_sub_u32 s41, s2, s41')
    a('s_mul_i32 s42, s41, 6554')
    a('s_lshr_b32 s42, s42, 16')
    a('s_mul_i32 s43, s42, 10')
    a('s_sub_u32 s43, s41, s43')
    a('s_lshl_b32 s44, s43, 2')
    a('s_add_u32 s44, s44, s3')
    a('v_and_b32 v1, 63, v0')
    a('v_and_b32 v2, 31, v1')
    a('v_lshrrev_b32 v3, 5, v1')
    a(f'v_mul_u32_u24 v4, {8*3072}, v3')
    a('v_lshl_add_u32 v4, v2, 4, v4')
    a('v_lshlrev_b32 v5, 5, v3')
    a(f's_mul_i32 s45, s44, {16*3072}')
    a('s_lshl_b32 s46, s42, 9')
    a('s_add_u32 s45, s45, s46')
    a('s_lshl_b32 s46, s44, 6')
    a(f's_add_u32 s47, s46, {3*640*4}')
    a(f's_add_u32 s46, s46, {4*640*4}')
    a('s_waitcnt lgkmcnt(0)')
    a('s_cmp_eq_u32 s40, 0')
    a('s_cselect_b32 s4, s4, s6')
    a('s_cselect_b32 s5, s5, s7')
    srd(a, 16, 4, 640*3072); srd(a, 20, 14, Y.SZ['MOD'], Y.MOD); srd(a, 24, 14, Y.SZ['WP'], Y.WP); srd(a, 28, 14, Y.SZ['STP'], Y.STP)
    a('buffer_load_dwordx4 v[8:11], v5, s[20:23], s46 offen')
    a('buffer_load_dwordx4 v[12:15], v5, s[20:23], s46 offen offset:16')
    a('buffer_load_dwordx4 v[16:19], v5, s[20:23], s47 offen')
    a('buffer_load_dwordx4 v[20:23], v5, s[20:23], s47 offen offset:16')
    Wr = 24
    for j in range(8):
        a(f'buffer_load_dwordx4 v[{Wr+4*j}:{Wr+4*j+3}], v4, s[16:19], s45 offen')
        if j < 7: a('s_add_u32 s45, s45, 3072')
    OUT, STv, TM = 56, 88, 104
    for q in range(16): a(f'v_mov_b32 v{STv+q}, 0')
    a('s_waitcnt vmcnt(8)')
    for j in range(8): a(f'v_add_f32 v{8+j}, 1.0, v{8+j}')
    for j in range(8):
        a(f'v_cvt_pk_bf16_f32 v{TM}, v{8+j}, v{8+j}')
        a(f'v_lshlrev_b32 v{8+j}, 16, v{TM}')
    for jp in range(4):
        a(f's_waitcnt vmcnt({6-2*jp})')
        j0, j1 = 2*jp, 2*jp+1
        for k in range(4):
            a(f'v_lshlrev_b32 v{TM}, 16, v{Wr+4*j0+k}')
            a(f'v_and_b32 v{TM+1}, 0xffff0000, v{Wr+4*j0+k}')
            a(f'v_lshlrev_b32 v{TM+2}, 16, v{Wr+4*j1+k}')
            a(f'v_and_b32 v{TM+3}, 0xffff0000, v{Wr+4*j1+k}')
            a(f'v_fmac_f32 v{STv+4*k+1}, v{16+j0}, v{TM}')
            a(f'v_fmac_f32 v{STv+4*k+3}, v{16+j0}, v{TM+1}')
            a(f'v_fmac_f32 v{STv+4*k+1}, v{16+j1}, v{TM+2}')
            a(f'v_fmac_f32 v{STv+4*k+3}, v{16+j1}, v{TM+3}')
            a(f'v_mul_f32 v{TM}, v{8+j0}, v{TM}')
            a(f'v_mul_f32 v{TM+1}, v{8+j0}, v{TM+1}')
            a(f'v_mul_f32 v{TM+2}, v{8+j1}, v{TM+2}')
            a(f'v_mul_f32 v{TM+3}, v{8+j1}, v{TM+3}')
            a(f'v_add_f32 v{STv+4*k}, v{STv+4*k}, v{TM}')
            a(f'v_add_f32 v{STv+4*k+2}, v{STv+4*k+2}, v{TM+1}')
            a(f'v_add_f32 v{STv+4*k}, v{STv+4*k}, v{TM+2}')
            a(f'v_add_f32 v{STv+4*k+2}, v{STv+4*k+2}, v{TM+3}')
            a(f'v_cvt_pk_bf16_f32 v{OUT+4*(2*k)+jp}, v{TM}, v{TM+2}')
            a(f'v_cvt_pk_bf16_f32 v{OUT+4*(2*k+1)+jp}, v{TM+1}, v{TM+3}')
    a('v_lshlrev_b32 v4, 4, v1')
    for q in range(8):
        a('s_lshl_b32 s48, s42, 3')
        a(f's_add_u32 s48, s48, {q}')
        a('s_mul_i32 s49, s48, 21846')
        a('s_lshr_b32 s49, s49, 16')
        a('s_mul_i32 s50, s49, 3')
        a('s_sub_u32 s50, s48, s50')
        a('s_mul_i32 s51, s40, 3')
        a('s_add_u32 s50, s50, s51')
        a('s_mul_i32 s49, s49, 40')
        a('s_add_u32 s49, s49, s44')
        a('s_mul_i32 s49, s49, 6')
        a('s_add_u32 s49, s49, s50')
        a('s_lshl_b32 s49, s49, 10')
        a(f'buffer_store_dwordx4 v[{OUT+4*q}:{OUT+4*q+3}], v4, s[24:27], s49 offen {stf}')
    a('s_lshl_b32 s48, s3, 12')
    a('v_lshlrev_b32 v5, 11, v3')
    a('v_lshl_add_u32 v5, v2, 6, v5')
    a('v_add_u32 v5, s48, v5')
    for k in range(4):
        a(f'ds_write_b128 v5, v[{STv+4*k}:{STv+4*k+3}] offset:{16*k}')
    a('s_waitcnt lgkmcnt(0)')
    a('s_barrier')
    a('v_lshlrev_b32 v5, 3, v0')
    for p in range(8):
        a(f'ds_read_b64 v[{8+2*p}:{9+2*p}], v5 offset:{2048*p}')
    a('v_and_b32 v24, 7, v0')
    a('s_lshl_b32 s48, s42, 3')
    a('v_add_u32 v24, s48, v24')
    a('v_mul_u32_u24 v25, 21846, v24')
    a('v_lshrrev_b32 v25, 16, v25')
    a('v_mul_u32_u24 v26, 3, v25')
    a('v_sub_u32 v26, v24, v26')
    a('s_mul_i32 s51, s40, 3')
    a('v_add_u32 v26, s51, v26')
    a('s_lshl_b32 s48, s43, 4')
    a('v_add_u32 v25, s48, v25')
    a('v_mul_u32_u24 v25, 192, v25')
    a('v_lshl_add_u32 v25, v26, 5, v25')
    a('v_lshrrev_b32 v26, 3, v0')
    a('v_add_u32 v25, v25, v26')
    a('v_lshlrev_b32 v25, 3, v25')
    a('s_waitcnt lgkmcnt(0)')
    for st in (4, 2, 1):
        for p in range(st):
            a(f'v_add_f32 v{8+2*p}, v{8+2*p}, v{8+2*(p+st)}')
            a(f'v_add_f32 v{9+2*p}, v{9+2*p}, v{9+2*(p+st)}')
    a(f'buffer_store_dwordx2 v[8:9], v25, s[28:31], 0 offen {stf}')
    a('s_endpgm')

def k2(a, stf=''):
    kernel_begin(a, 'k2_kernel')
    a('s_cmp_lt_u32 s2, 120')
    a('s_cbranch_scc1 k2_prep')
    a('s_cmp_lt_u32 s2, 128')
    a('s_cbranch_scc1 k2_exit')
    a(f's_cmp_lt_u32 s2, {K2_GRID}')
    a('s_cbranch_scc1 k2_conv')
    a('k2_exit:')
    a('s_endpgm')
    role_conv(a, stf); role_p(a, stf)
if __name__ == '__main__':
    for q in range(60): assert (q * 6554) >> 16 == q // 10
    for q in range(48): assert (q * 21846) >> 16 == q // 3
    print('ok')
```

```python
from asmgen import *
import layout as Y
K3_GRID = 256
NSLOT = 7
SLOT = 20480
SOFF = NSLOT * SLOT
K3_LDS = SOFF + 1536
K3_VGPR = 256
K3_ACC = 256
LOG2E = 1.4426950408889634
GC0 = -2 * 0.7978845608028654 * LOG2E
GC1 = GC0 * 0.044715
WA, TA_, WB, TB_, ACC = 20, 44, 48, 72, 80

def dma_stage(a, interleave=None):
    g = []
    g.append(['s_add_u32 m0, s46, s50', 's_add_u32 s49, s44, 16384', 'buffer_load_dwordx4 v7, s[16:19], s44 offen lds'])
    g.append(['s_add_u32 s52, s50, 1024', 's_add_u32 m0, s46, s52', 's_nop 0', 'buffer_load_dwordx4 v7, s[16:19], s49 offen lds'])
    g.append(['s_add_u32 m0, s46, s51', 's_add_u32 s44, s44, 131072', 'buffer_load_dwordx4 v8, s[20:23], s45 offen lds'])
    g.append(['buffer_load_dwordx4 v8, s[20:23], s45 offen offset:1024 lds'])
    g.append(['buffer_load_dwordx4 v8, s[20:23], s45 offen offset:2048 lds', 's_add_u32 s45, s45, 12288',
              f's_add_u32 s46, s46, {SLOT}', f's_cmp_eq_u32 s46, {NSLOT*SLOT}', 's_cselect_b32 s46, 0, s46'])
    return g

def reads(W, T_, vW, vT, sub):
    r = []
    r.append(f'ds_read_b64_tr_b16 v[{T_}:{T_+1}], v{vT} offset:{sub*4096}')
    r.append(f'ds_read_b64_tr_b16 v[{T_+2}:{T_+3}], v{vT} offset:{sub*4096+1024}')
    for j in range(6):
        r.append(f'ds_read_b128 v[{W+4*j}:{W+4*j+3}], v{vW} offset:{8192 + (sub*6+j)*1024}')
    return r

def stats_ops(T_):
    o = []
    for k in range(4):
        lo, hi = 14 + 2*(k & 1), 15 + 2*(k & 1)
        o.append(f'v_lshlrev_b32 v{lo}, 16, v{T_+k}')
        o.append(f'v_and_b32 v{hi}, 0xffff0000, v{T_+k}')
        o.append(f'v_add_f32 v10, v10, v{lo}')
        o.append(f'v_add_f32 v11, v11, v{hi}')
        o.append(f'v_fmac_f32 v12, v{lo}, v{lo}')
        o.append(f'v_fmac_f32 v13, v{hi}, v{hi}')
    return o

def mfmas(a, W, T_, fillers, first=False):
    n = len(fillers)
    k = 0
    for j in range(6):
        c = '0' if first else f'v[{ACC+16*j}:{ACC+16*j+15}]'
        a(f'v_mfma_f32_32x32x16_bf16 v[{ACC+16*j}:{ACC+16*j+15}], v[{W+4*j}:{W+4*j+3}], v[{T_}:{T_+3}], {c}')
        upto = (n * (j + 1)) // 6
        while k < upto:
            a(fillers[k]); k += 1

def step(a, dma, vm, last=False, first=False):
    if vm is not None: a(f's_waitcnt vmcnt({vm})')
    a('s_barrier')
    for r in reads(WB, TB_, 2, 1, 1): a(r)
    a('s_waitcnt lgkmcnt(8)')
    f = stats_ops(TA_)
    if dma:
        g = dma_stage(a)
        flat = []
        per = len(f) // len(g)
        for i, grp in enumerate(g):
            flat += f[i*per:(i+1)*per] + grp
        flat += f[len(g)*per:]
        f = flat
    mfmas(a, WA, TA_, f, first)
    a('s_waitcnt lgkmcnt(0)')
    f = stats_ops(TB_)
    if not last:
        a('v_mov_b32 v1, v3')
        a('v_mov_b32 v2, v4')
        for r in reads(WA, TA_, 4, 3, 0): a(r)
        a(f's_add_u32 s47, s47, {SLOT}')
        a(f's_cmp_eq_u32 s47, {NSLOT*SLOT}')
        a('s_cselect_b32 s47, 0, s47')
        f = f + ['v_add_u32 v3, s47, v5', 'v_add_u32 v4, s47, v6']
    mfmas(a, WB, TB_, f)

def k3(a, stf=''):
    kernel_begin(a, 'k3_kernel')
    a('s_cmp_ge_u32 s2, 256')
    a('s_cbranch_scc1 k3_exit')
    wave_id(a, 3, 1)
    a('s_load_dwordx2 s[14:15], s[0:1], 120')
    a('s_and_b32 s42, s2, 7')
    a('s_lshr_b32 s43, s2, 3')
    a('s_and_b32 s40, s42, 1')
    a('s_lshl_b32 s40, s40, 3')
    a('s_and_b32 s44, s43, 7')
    a('s_add_u32 s40, s40, s44')
    a('s_lshr_b32 s41, s42, 1')
    a('s_lshl_b32 s41, s41, 2')
    a('s_lshr_b32 s44, s43, 3')
    a('s_add_u32 s41, s41, s44')
    a('v_and_b32 v9, 63, v0')
    a('v_lshrrev_b32 v10, 4, v9')
    a('v_and_b32 v11, 15, v9')
    a('v_lshlrev_b32 v12, 2, v10')
    a('v_xor_b32 v11, v11, v12')
    a('v_lshlrev_b32 v11, 4, v11')
    a('v_lshl_add_u32 v7, v10, 12, v11')
    a('v_lshlrev_b32 v8, 4, v9')
    a('v_mov_b32 v6, v8')
    a('v_lshrrev_b32 v11, 5, v9')
    a('v_bfe_u32 v12, v9, 2, 2')
    a('v_lshl_add_u32 v13, v11, 3, v12')
    a('v_bfe_u32 v14, v9, 4, 1')
    a('v_bfe_u32 v15, v9, 1, 1')
    a('v_lshl_add_u32 v14, v14, 1, v15')
    a('s_lshl_b32 s44, s3, 2')
    a('v_add_u32 v14, s44, v14')
    a('v_lshlrev_b32 v15, 2, v12')
    a('v_xor_b32 v14, v14, v15')
    a('v_lshlrev_b32 v14, 4, v14')
    a('v_lshl_add_u32 v14, v13, 8, v14')
    a('v_and_b32 v15, 1, v9')
    a('v_lshl_add_u32 v5, v15, 3, v14')
    a('s_lshl_b32 s44, s3, 15')
    a('s_lshl_b32 s45, s40, 8')
    a('s_add_u32 s44, s44, s45')
    a('s_mul_i32 s45, s41, 245760')
    a('s_mul_i32 s46, s3, 3072')
    a('s_add_u32 s45, s45, s46')
    a('s_lshl_b32 s50, s3, 11')
    a('s_add_u32 s51, s46, 8192')
    a('s_mov_b32 s46, 0')
    a('s_waitcnt lgkmcnt(0)')
    srd(a, 16, 14, Y.SZ['X1T'], Y.X1T); srd(a, 20, 14, Y.SZ['WP'], Y.WP); srd(a, 24, 14, Y.SZ['STP'], Y.STP); srd(a, 28, 14, Y.SZ['ACT'], Y.ACT)
    a('s_cmp_eq_u32 s3, 3')
    a('s_cbranch_scc1 k3_nost')
    a('v_lshlrev_b32 v9, 3, v0')
    a('s_mul_i32 s53, s41, 1536')
    for kr in range(10):
        a(f'buffer_load_dwordx2 v[{48+2*kr}:{49+2*kr}], v9, s[24:27], s53 offen')
        a(f's_add_u32 s53, s53, {16*1536}')
    a('k3_nost:')
    for st in range(6):
        for grp in dma_stage(a):
            for i in grp: a(i)
    a('s_cmp_eq_u32 s3, 3')
    a('s_cbranch_scc1 k3_nost2')
    a('s_waitcnt vmcnt(30)')
    for st in (5,):
        for p in range(5):
            a(f'v_add_f32 v{48+2*p}, v{48+2*p}, v{58+2*p}')
            a(f'v_add_f32 v{49+2*p}, v{49+2*p}, v{59+2*p}')
    for p in (1, 2, 3, 4):
        a(f'v_add_f32 v48, v48, v{48+2*p}')
        a(f'v_add_f32 v49, v49, v{49+2*p}')
    a('v_lshlrev_b32 v9, 2, v0')
    a(f'v_add_u32 v9, {SOFF}, v9')
    a('ds_write_b32 v9, v48')
    a('ds_write_b32 v9, v49 offset:768')
    a('k3_nost2:')
    for r in range(10, 14): a(f'v_mov_b32 v{r}, 0')
    a('v_mov_b32 v3, v5')
    a('v_mov_b32 v4, v6')
    a('s_waitcnt vmcnt(25)')
    a('s_barrier')
    for r in reads(WA, TA_, 4, 3, 0): a(r)
    a('v_mov_b32 v1, v3')
    a('v_mov_b32 v2, v4')
    a(f's_mov_b32 s47, {SLOT}')
    a('v_add_u32 v3, s47, v5')
    a('v_add_u32 v4, s47, v6')
    step(a, True, 20, first=True)
    a('s_mov_b32 s48, 13')
    a('k3_loop:')
    step(a, True, 20)
    a('s_sub_u32 s48, s48, 1')
    a('s_cmp_lg_u32 s48, 0')
    a('s_cbranch_scc1 k3_loop')
    for s in range(14, 20):
        later = max(0, 19 - (s + 1))
        step(a, False, 5*later if s < 19 else None, last=(s == 19))
    a('v_add_f32 v10, v10, v11')
    a('v_add_f32 v12, v12, v13')
    a('v_mov_b32 v11, v10')
    a('v_mov_b32 v13, v12')
    a('s_nop 1')
    a('v_permlane32_swap_b32 v10, v11')
    a('v_permlane32_swap_b32 v12, v13')
    a('s_nop 1')
    a('v_add_f32 v10, v10, v11')
    a('v_add_f32 v12, v12, v13')
    a(f'v_mul_f32 v10, {f32(1/640)}, v10')
    a(f'v_mul_f32 v12, {f32(1/640)}, v12')
    a('v_fma_f32 v12, -v10, v10, v12')
    a('v_max_f32 v12, 0, v12')
    a(f'v_add_f32 v12, {f32(1e-5)}, v12')
    a('v_rsq_f32 v11, v12')
    a('v_bfe_u32 v9, v0, 5, 1')
    a('v_lshlrev_b32 v1, 4, v9')
    a(f'v_add_u32 v1, {SOFF}, v1')
    a('v_bfe_u32 v2, v0, 4, 1')
    a('v_lshlrev_b32 v2, 10, v2')
    a('v_lshl_add_u32 v2, v9, 9, v2')
    a('v_and_b32 v3, 15, v0')
    a('v_lshl_add_u32 v2, v3, 4, v2')
    a('s_lshl_b32 s44, s40, 1')
    a('s_lshr_b32 s45, s3, 1')
    a('s_add_u32 s44, s44, s45')
    a('s_mul_i32 s44, s44, 48')
    a('s_mul_i32 s45, s41, 3')
    a('s_add_u32 s44, s44, s45')
    a('s_lshl_b32 s44, s44, 12')
    a('s_and_b32 s45, s3, 1')
    a('s_lshl_b32 s45, s45, 11')
    a('s_add_u32 s44, s44, s45')
    a(f's_mov_b32 s54, {f32(GC0)}')
    a(f's_mov_b32 s55, {f32(GC1)}')
    P = 20
    OUTR = 56
    TM = 64
    def rd_st(j0, blk, base):
        a(f'ds_read_b128 v[{base}:{base+3}], v1 offset:{(j0*32 + 8*blk)*4}')
        a(f'ds_read_b128 v[{base+4}:{base+7}], v1 offset:{768 + (j0*32 + 8*blk)*4}')
        a(f'ds_read_b128 v[{base+8}:{base+11}], v1 offset:{((3+j0)*32 + 8*blk)*4}')
        a(f'ds_read_b128 v[{base+12}:{base+15}], v1 offset:{768 + ((3+j0)*32 + 8*blk)*4}')
    seq = [(j0, blk) for j0 in range(3) for blk in range(4)]
    rd_st(0, 0, P)
    for n, (j0, blk) in enumerate(seq):
        base = P + 16*(n & 1)
        if n + 1 < len(seq):
            rd_st(seq[n+1][0], seq[n+1][1], P + 16*((n+1) & 1))
            a('s_waitcnt lgkmcnt(4)')
        else:
            a('s_waitcnt lgkmcnt(0)')
        G = [ACC + 16*j0 + 4*blk + r for r in range(4)]
        U = [ACC + 16*(3+j0) + 4*blk + r for r in range(4)]
        for r in range(4): a(f'v_fma_f32 v{G[r]}, -v10, v{base+r}, v{G[r]}')
        for r in range(4): a(f'v_fma_f32 v{U[r]}, -v10, v{base+8+r}, v{U[r]}')
        for r in range(4): a(f'v_fma_f32 v{G[r]}, v11, v{G[r]}, v{base+4+r}')
        for r in range(4): a(f'v_fma_f32 v{U[r]}, v11, v{U[r]}, v{base+12+r}')
        for r in range(4): a(f'v_mul_f32 v{TM+r}, v{G[r]}, v{G[r]}')
        for r in range(4): a(f'v_fma_f32 v{TM+r}, v{TM+r}, s55, v{TM+4}') if False else None
        for r in range(4):
            a(f'v_mov_b32 v{TM+4+r}, s54')
            a(f'v_fmac_f32 v{TM+4+r}, s55, v{TM+r}')
        for r in range(4): a(f'v_mul_f32 v{TM+r}, v{G[r]}, v{TM+4+r}')
        for r in range(4): a(f'v_exp_f32 v{TM+r}, v{TM+r}')
        for r in range(4): a(f'v_add_f32 v{TM+r}, 1.0, v{TM+r}')
        for r in range(4): a(f'v_rcp_f32 v{TM+r}, v{TM+r}')
        for r in range(4): a(f'v_mul_f32 v{G[r]}, v{G[r]}, v{U[r]}')
        for r in range(4): a(f'v_mul_f32 v{G[r]}, v{G[r]}, v{TM+r}')
        o = OUTR + 2*blk
        a(f'v_cvt_pk_bf16_f32 v{o}, v{G[0]}, v{G[1]}')
        a(f'v_cvt_pk_bf16_f32 v{o+1}, v{G[2]}, v{G[3]}')
        if blk == 1:
            a(f'buffer_store_dwordx4 v[{OUTR}:{OUTR+3}], v2, s[28:31], s44 offen {stf}')
        if blk == 3:
            a(f'buffer_store_dwordx4 v[{OUTR+4}:{OUTR+7}], v2, s[28:31], s44 offen offset:256 {stf}')
            a('s_add_u32 s44, s44, 4096')
    a('k3_exit:')
    a('s_endpgm')
```

```python
from asmgen import *
import layout as Y
K4_GRID = 256
RED = 10240
K4_LDS = RED + 61440
K4_VGPR = 256 + 80
K4_ACC = 256
PD = 5
STG = 16

def k4(a, stf='', outf=''):
    kernel_begin(a, 'k4_kernel')
    a('s_cmp_ge_u32 s2, 256')
    a('s_cbranch_scc1 k4_exit')
    wave_id(a, 3, 1)
    a('s_load_dwordx2 s[12:13], s[0:1], 104')
    a('s_load_dwordx2 s[14:15], s[0:1], 120')
    a('s_and_b32 s42, s2, 7')
    a('s_lshr_b32 s43, s2, 3')
    a('s_lshr_b32 s40, s42, 1')
    a('s_lshl_b32 s40, s40, 3')
    a('s_and_b32 s44, s43, 7')
    a('s_add_u32 s40, s40, s44')
    a('s_and_b32 s41, s42, 1')
    a('s_lshl_b32 s41, s41, 2')
    a('s_lshr_b32 s44, s43, 3')
    a('s_add_u32 s41, s41, s44')
    a('v_and_b32 v9, 63, v0')
    a('v_lshlrev_b32 v1, 4, v9')
    a('s_mul_i32 s48, s40, 48')
    a('s_mul_i32 s49, s3, 12')
    a('s_add_u32 s48, s48, s49')
    a('s_lshl_b32 s48, s48, 12')
    for tl in range(4):
        a(f's_add_u32 s50, s3, {tl}')
        a('s_and_b32 s50, s50, 3')
        a('s_lshl_b32 s50, s50, 10')
        a(f's_add_u32 s{44+tl}, s48, s50')
    a('s_mul_i32 s48, s41, 48')
    a('s_mul_i32 s49, s3, 12')
    a('s_add_u32 s48, s48, s49')
    a('s_mul_i32 s48, s48, 5120')
    a('s_add_u32 s49, s48, 4096')
    a('v_lshrrev_b32 v2, 3, v9')
    a('v_lshlrev_b32 v2, 12, v2')
    a('v_and_b32 v3, 7, v9')
    a('v_lshl_add_u32 v2, v3, 4, v2')
    a('s_mul_i32 s50, s41, 80')
    a('s_lshl_b32 s51, s3, 3')
    a('s_add_u32 s50, s50, s51')
    a('s_lshl_b32 s50, s50, 12')
    a('s_lshl_b32 s51, s40, 7')
    a('s_add_u32 s50, s50, s51')
    a('s_lshl_b32 s51, s3, 10')
    a('v_lshrrev_b32 v3, 4, v9')
    a('v_lshlrev_b32 v3, 4, v3')
    a('s_mul_i32 s52, s41, 320')
    a(f's_add_u32 s52, s52, {3200*4}')
    a('s_waitcnt lgkmcnt(0)')
    srd(a, 16, 14, Y.SZ['ACT'], Y.ACT); srd(a, 20, 14, Y.SZ['WDP'], Y.WDP); srd(a, 24, 14, Y.SZ['X1T'], Y.X1T)
    srd(a, 28, 14, Y.SZ['MOD'], Y.MOD); srd(a, 32, 12, 2048*1280)
    def loads(s):
        b = STG + 36*(s % PD)
        o = []
        for tl in range(4):
            o.append(f'buffer_load_dwordx4 v[{b+4*tl}:{b+4*tl+3}], v1, s[16:19], s{44+tl} offen')
        for m in range(4):
            o.append(f'buffer_load_dwordx4 v[{b+16+4*m}:{b+19+4*m}], v1, s[20:23], s48 offen offset:{1024*m}')
        o.append(f'buffer_load_dwordx4 v[{b+32}:{b+35}], v1, s[20:23], s49 offen')
        for tl in range(4): o.append(f's_add_u32 s{44+tl}, s{44+tl}, 4096')
        o.append('s_add_u32 s48, s48, 5120')
        o.append('s_add_u32 s49, s49, 5120')
        return o
    for s in range(PD):
        for i in loads(s): a(i)
    for k in range(3):
        skip = a.label('k4_skip')
        if k == 2:
            a('s_cmp_ge_u32 s3, 2')
            a(f's_cbranch_scc1 {skip}')
        a('s_mov_b32 m0, s51')
        a('s_add_u32 s51, s51, 4096')
        a('buffer_load_dwordx4 v2, s[24:27], s50 offen lds')
        a(f's_add_u32 s50, s50, {32*4096}')
        if k == 2: a(f'{skip}:')
    GB = 200
    for m in range(5):
        a(f'buffer_load_dwordx4 v[{GB+4*m}:{GB+4*m+3}], v3, s[28:31], s52 offen offset:{64*m}')
    EXTRA = 7
    for s in range(12):
        nl = min(PD - 1, 11 - s)
        ex = EXTRA if s < PD else 0
        if s == 0: cnt = 9*(PD-1) + EXTRA
        elif s < PD: cnt = 9*(PD-1-s) + EXTRA + 9*min(s, 12-PD)
        else: cnt = 9*nl
        a(f's_waitcnt vmcnt({min(cnt, 63)})')
        b = STG + 36*(s % PD)
        nxt = loads(s + PD) if s + PD < 12 else []
        for m in range(5):
            for tl in range(4):
                acc = 20*tl + 4*m
                c = '0' if s == 0 else f'a[{acc}:{acc+3}]'
                a(f'v_mfma_f32_16x16x32_bf16 a[{acc}:{acc+3}], v[{b+16+4*m}:{b+19+4*m}], v[{b+4*tl}:{b+4*tl+3}], {c}')
        for i in nxt: a(i)
    for tl in range(1, 4):
        a(f's_add_u32 s50, s3, {tl}')
        a('s_and_b32 s50, s50, 3')
        a('s_mul_i32 s50, s50, 15360')
        a(f's_add_u32 s50, s50, {RED + (tl-1)*5120}')
        a(f'v_add_u32 v{4+tl}, s50, v1')
    a('s_nop 7')
    for tl in range(1, 4):
        for m in range(5):
            a(f'ds_write_b128 v{4+tl}, a[{20*tl+4*m}:{20*tl+4*m+3}] offset:{1024*m}')
    a('s_mul_i32 s50, s3, 15360')
    a(f's_add_u32 s50, s50, {RED}')
    a('v_add_u32 v4, s50, v1')
    a('v_lshrrev_b32 v5, 4, v9')
    a('v_bfe_u32 v6, v9, 2, 2')
    a('v_lshl_add_u32 v5, v5, 2, v6')
    a('v_lshlrev_b32 v5, 7, v5')
    a('v_and_b32 v6, 3, v9')
    a('v_lshl_add_u32 v5, v6, 3, v5')
    a('s_lshl_b32 s50, s3, 5')
    a('v_add_u32 v5, s50, v5')
    a('s_lshl_b32 s50, s40, 6')
    a('s_lshl_b32 s51, s3, 4')
    a('s_add_u32 s50, s50, s51')
    a('v_and_b32 v6, 15, v9')
    a('v_add_u32 v6, s50, v6')
    a('v_mul_u32_u24 v6, 1280, v6')
    a('v_lshrrev_b32 v7, 4, v9')
    a('v_lshl_add_u32 v6, v7, 3, v6')
    a('s_mul_i32 s50, s41, 160')
    a('v_add_u32 v6, s50, v6')
    for m in range(5):
        for r in range(4): a(f'v_accvgpr_read_b32 v{16+4*m+r}, a{4*m+r}')
    a('s_waitcnt vmcnt(0) lgkmcnt(0)')
    a('s_barrier')
    X = 100
    for m in range(5):
        a(f'ds_read_b64_tr_b16 v[{X+2*m}:{X+2*m+1}], v5 offset:{2048*m}')
    Rr = 36
    for sl in range(3):
        for m in range(5):
            a(f'ds_read_b128 v[{Rr+20*sl+4*m}:{Rr+20*sl+4*m+3}], v4 offset:{(sl*5+m)*1024}')
    a('s_waitcnt lgkmcnt(10)')
    for sl in range(3):
        if sl == 1: a('s_waitcnt lgkmcnt(5)')
        if sl == 2: a('s_waitcnt lgkmcnt(0)')
        for i in range(20): a(f'v_add_f32 v{16+i}, v{16+i}, v{Rr+20*sl+i}')
    for m in range(5):
        a(f'v_lshlrev_b32 v110, 16, v{X+2*m}')
        a(f'v_and_b32 v111, 0xffff0000, v{X+2*m}')
        a(f'v_lshlrev_b32 v112, 16, v{X+2*m+1}')
        a(f'v_and_b32 v113, 0xffff0000, v{X+2*m+1}')
        for r in range(4): a(f'v_fma_f32 v{110+r}, v{GB+4*m+r}, v{16+4*m+r}, v{110+r}')
        a(f'v_cvt_pk_bf16_f32 v{114+2*m}, v110, v111')
        a(f'v_cvt_pk_bf16_f32 v{115+2*m}, v112, v113')
        a(f'buffer_store_dwordx2 v[{114+2*m}:{115+2*m}], v6, s[32:35], 0 offen offset:{32*m} {outf}')
    a('k4_exit:')
    a('s_endpgm')
```

```python
import numpy as np
L, D, N, F = 2048, 640, 192, 1536
MOD  = 0x000000
ST1  = 0x004000
STP  = 0x010000
KT   = 0x050000
KT_STRIDE = 1296
XT   = 0x200000
X1T  = 0x500000
WP   = 0x800000
WDP  = 0xC00000
ACT  = 0xE00000
WS_USED = 0x1400000
SZ = dict(MOD=3840*4, ST1=2048*8, STP=10*16*192*8, KT=640*1296, XT=640*4096, X1T=640*4096, WP=16*40*6*1024, WDP=8*48*5*1024, ACT=32*48*4*1024)

def fmap(T, i): return 256 * (T >> 3) + 8 * i + (T & 7)
def rho(g, j): return 16 * (g & 1) + 8 * (j >> 2) + 4 * (g >> 1) + (j & 3)
def pos_idx(l):
    if l < 256: return l
    s = l.bit_length() - 8
    q = l >> s; rem = l & ((1 << s) - 1); half = 1 << (s - 1)
    if rem > half or (rem == half and (q & 1)): q += 1
    return 128 * s + q
def idx_pos(i):
    if i <= 256: return i
    s = (i - 128) // 128
    if i == 640: return 2048
    s = (i // 128) - 1
    return (i - 128 * s) << s
if __name__ == '__main__':
    import struct
    def bf16r(x):
        u = struct.unpack('<I', struct.pack('<f', x))[0]
        u = (u + 0x7fff + ((u >> 16) & 1)) & 0xffff0000
        return struct.unpack('<f', struct.pack('<I', u))[0]
    for l in range(2048):
        assert idx_pos(pos_idx(l)) == int(bf16r(float(l))), (l, pos_idx(l), idx_pos(pos_idx(l)), bf16r(float(l)))
    print('pos map ok', max(pos_idx(l) for l in range(2048)))
```

```python
import sys
from asmgen import *
import layout as Y
import k1
def build(kernels, stf=''):
    a = Asm()
    launches = []
    if 'k1' in kernels: launches.append(f'; @launch kernel=k1_kernel grid=({k1.K1_GRID},1,1) block=(256,1,1) lds={k1.K1_LDS}')
    try:
        import k2
        if 'k2' in kernels: launches.append(f'; @launch kernel=k2_kernel grid=({k2.K2_GRID},1,1) block=(256,1,1) lds={k2.K2_LDS}')
    except ImportError: pass
    try:
        import k3
        if 'k3' in kernels: launches.append(f'; @launch kernel=k3_kernel grid=({k3.K3_GRID},1,1) block=(256,1,1) lds={k3.K3_LDS}')
    except ImportError: pass
    try:
        import k4
        if 'k4' in kernels: launches.append(f'; @launch kernel=k4_kernel grid=({k4.K4_GRID},1,1) block=(256,1,1) lds={k4.K4_LDS}')
    except ImportError: pass
    hdr = [l for l in open('adaLN_cond__ssm_conv_s4d__geglu_ffn__prompt.s.ref').read().split('\n') if l.startswith(';') and '@launch' not in l and 'Override launch' not in l and 'grid=ceil' not in l]
    hdr = hdr[:18]
    a('\n'.join(hdr))
    a('\n'.join(launches))
    a('.amdgcn_target "amdgcn-amd-amdhsa--gfx950"')
    a('.text')
    if 'k1' in kernels: k1.k1(a, stf)
    if 'k2' in kernels: k2.k2(a, stf)
    if 'k3' in kernels: k3.k3(a, stf)
    if 'k4' in kernels: k4.k4(a, stf)
    if 'k1' in kernels: descriptor(a, 'k1_kernel', 96)
    if 'k2' in kernels: descriptor(a, 'k2_kernel', k2.K2_VGPR)
    if 'k3' in kernels: descriptor(a, 'k3_kernel', k3.K3_VGPR, accum=k3.K3_ACC)
    if 'k4' in kernels: descriptor(a, 'k4_kernel', k4.K4_VGPR, accum=k4.K4_ACC)
    return a.text()
if __name__ == '__main__':
    out = sys.argv[1]
    ks = sys.argv[2].split(',')
    stf = sys.argv[3] if len(sys.argv) > 3 else 'sc1'
    open(out, 'w').write(build(ks, stf))
```

```python
import struct
class Asm:
    def __init__(self):
        self.lines = []
        self.uid = 0
    def __call__(self, s=''):
        for l in s.split('\n'):
            self.lines.append(l)
    def label(self, base='L'):
        self.uid += 1
        return f'{base}_{self.uid}'
    def text(self): return '\n'.join(self.lines) + '\n'

def f32(x):
    return '0x%08x' % struct.unpack('<I', struct.pack('<f', x))[0]

def kernel_begin(a, name):
    a(f'.globl {name}')
    a('.p2align 8')
    a(f'.type {name},@function')
    a(f'{name}:')

def descriptor(a, name, vgpr, sgpr=102, accum=None, wgy=False):
    acc = accum if accum is not None else min(256, (vgpr + 3) // 4 * 4)
    a('.section .rodata,"a"')
    a('.p2align 6')
    a(f'.amdhsa_kernel {name}')
    a(f'  .amdhsa_next_free_vgpr {vgpr}')
    a(f'  .amdhsa_next_free_sgpr {sgpr}')
    a(f'  .amdhsa_accum_offset {acc}')
    a('  .amdhsa_group_segment_fixed_size 0')
    a('  .amdhsa_kernarg_size 128')
    a('  .amdhsa_user_sgpr_count 2')
    a('  .amdhsa_user_sgpr_kernarg_segment_ptr 1')
    a('  .amdhsa_system_sgpr_workgroup_id_x 1')
    if wgy: a('  .amdhsa_system_sgpr_workgroup_id_y 1')
    a('  .amdhsa_float_denorm_mode_32 3')
    a('.end_amdhsa_kernel')
    a('.text')

def vr(b, n=1): return f'v{b}' if n == 1 else f'v[{b}:{b+n-1}]'
def ar(b, n=1): return f'a{b}' if n == 1 else f'a[{b}:{b+n-1}]'
def sr(b, n=1): return f's{b}' if n == 1 else f's[{b}:{b+n-1}]'

def srd(a, dst, base, size, off=0):
    if off:
        a(f's_add_u32 s{dst}, s{base}, {hex(off)}')
        a(f's_addc_u32 s{dst+1}, s{base+1}, 0')
    else:
        a(f's_mov_b32 s{dst}, s{base}')
        a(f's_mov_b32 s{dst+1}, s{base+1}')
    a(f's_mov_b32 s{dst+2}, {hex(size)}')
    a(f's_mov_b32 s{dst+3}, 0x20000')

def wave_id(a, sdst, vtmp):
    a(f'v_lshrrev_b32 v{vtmp}, 6, v0')
    a('s_nop 0')
    a(f'v_readfirstlane_b32 s{sdst}, v{vtmp}')

def bf16r(a, v, t):
    a(f'v_cvt_pk_bf16_f32 v{t}, v{v}, v{v}')
    a(f'v_lshlrev_b32 v{v}, 16, v{t}')

STAMPS = False
STAMP_BASE = 0x1800000
def stamp(a, i):
    import asmgen as _g
    if not _g.STAMPS: return
    a(f's_memtime s[90:91]')
    if i == 0: a('s_memrealtime s[92:93]')
    a('s_waitcnt lgkmcnt(0)')
    a(f's_mov_b32 s{80+i}, s90')
    if i == 0: a('s_mov_b32 s100, s92')
def stamp_flush(a, kidx, n, wave_sgpr=None):
    import asmgen as _g
    if not _g.STAMPS: return
    lab = a.label('stampskip')
    a('s_memrealtime s[92:93]')
    a('s_load_dwordx2 s[94:95], s[0:1], 120')
    a('s_waitcnt lgkmcnt(0)')
    a(f's_add_u32 s96, s94, {hex(STAMP_BASE + kidx*2048*64)}')
    a('s_addc_u32 s97, s95, 0')
    a('s_mov_b32 s98, 0x20000')
    a('s_mov_b32 s99, 0x20000')
    a('v_cmp_eq_u32 vcc, 0, v0')
    a('s_and_saveexec_b64 s[90:91], vcc')
    a(f's_cbranch_execz {lab}')
    a('s_lshl_b32 s93, s2, 6')
    a('v_mov_b32 v1, s93')
    a('v_mov_b32 v2, s100'); a('v_mov_b32 v3, s92')
    a('buffer_store_dwordx2 v[2:3], v1, s[96:99], 0 offen')
    for i in range(n):
        a(f'v_mov_b32 v2, s{80+i}')
        a(f'buffer_store_dword v2, v1, s[96:99], 0 offen offset:{8+4*i}')
    a('s_getreg_b32 s92, hwreg(HW_REG_HW_ID)')
    a('s_getreg_b32 s93, hwreg(HW_REG_XCC_ID)')
    a('s_and_b32 s93, s93, 15')
    a('s_lshl_b32 s93, s93, 16')
    a('s_and_b32 s92, s92, 0xffff')
    a('s_or_b32 s92, s92, s93')
    a('v_mov_b32 v2, s92')
    a('buffer_store_dword v2, v1, s[96:99], 0 offen offset:60')
    a(f'{lab}:')
    a('s_mov_b64 exec, s[90:91]')

HSTAMP = False
NLAUNCH = 4
def hstamp_start(a, kidx):
    import asmgen as _g
    if not _g.HSTAMP: return
    lab = a.label('hs')
    a('s_cmp_lg_u32 s2, 0')
    a(f's_cbranch_scc1 {lab}')
    a('s_memrealtime s[92:93]')
    a('s_load_dwordx2 s[94:95], s[0:1], 112')
    a('s_waitcnt lgkmcnt(0)')
    a(f's_add_u32 s96, s94, {(_g.NLAUNCH-1-kidx)*512}')
    a('s_addc_u32 s97, s95, 0')
    a('s_mov_b32 s98, 256')
    a('s_mov_b32 s99, 0x20000')
    a('v_mov_b32 v1, s92')
    a(f'v_mov_b32 v2, {4*kidx}')
    a('buffer_store_dword v1, v2, s[96:99], 0 offen')
    a(f'{lab}:')
def hstamp_end(a, kidx, slot):
    import asmgen as _g
    if not _g.HSTAMP: return
    lab = a.label('he')
    a('s_waitcnt vmcnt(0)')
    a('s_cmp_ge_u32 s2, 16')
    a(f's_cbranch_scc1 {lab}')
    a('s_memrealtime s[92:93]')
    a('s_load_dwordx2 s[94:95], s[0:1], 112')
    a('s_waitcnt lgkmcnt(0)')
    a(f's_add_u32 s96, s94, {(_g.NLAUNCH-1-kidx)*512}')
    a('s_addc_u32 s97, s95, 0')
    a('s_mov_b32 s98, 256')
    a('s_mov_b32 s99, 0x20000')
    a('s_mov_b64 exec, 1')
    a('v_mov_b32 v1, s92')
    a(f'v_mov_b32 v2, {4*slot}')
    a('buffer_atomic_umax v1, v2, s[96:99], 0 offen')
    a(f'{lab}:')

TRACE = False
def trace_init(a, v, sidx):
    import asmgen as _g
    if not _g.TRACE: return
    a(f'v_mov_b32 v{v}, 0'); a(f's_mov_b32 s{sidx}, 0')
def trace(a, v, sidx):
    import asmgen as _g
    if not _g.TRACE: return
    a('s_memtime s[90:91]')
    a('s_waitcnt lgkmcnt(0)')
    a(f's_mov_b32 m0, s{sidx}')
    a('s_nop 3')
    a(f'v_writelane_b32 v{v}, s90, m0')
    a(f's_add_u32 s{sidx}, s{sidx}, 1')
def trace_flush(a, v, region, wave_sgpr):
    import asmgen as _g
    if not _g.TRACE: return
    a('s_load_dwordx2 s[94:95], s[0:1], 120')
    a('s_waitcnt lgkmcnt(0)')
    a(f's_add_u32 s96, s94, {hex(STAMP_BASE + 0x100000)}')
    a('s_addc_u32 s97, s95, 0')
    a('s_mov_b32 s98, 0x100000')
    a('s_mov_b32 s99, 0x20000')
    a('s_lshl_b32 s93, s2, 11')
    a(f's_lshl_b32 s92, s{wave_sgpr}, 8')
    a('s_add_u32 s93, s93, s92')
    a('v_and_b32 v1, 63, v0')
    a('v_lshlrev_b32 v1, 2, v1')
    a(f'buffer_store_dword v{v}, v1, s[96:99], s93 offen')
    a('s_waitcnt vmcnt(0)')
```

```python
from asmgen import *
import layout as Y
LOG2E = 1.4426950408889634
K1_LDS = 27648
K1_GRID = 1048
K0, G0, T0, S0 = 0, 640, 760, 920

def cexp(a, dst, p, zr, zi, t0, t1):
    if p == 1:
        a(f'v_exp_f32 v{t0}, v{zr}')
        a(f'v_fract_f32 v{t1}, v{zi}')
    else:
        a(f'v_mul_f32 v{t0}, {f32(float(p))}, v{zr}')
        a(f'v_mul_f32 v{t1}, {f32(float(p))}, v{zi}')
        a(f'v_exp_f32 v{t0}, v{t0}')
        a(f'v_fract_f32 v{t1}, v{t1}')
    a(f'v_cos_f32 v{dst}, v{t1}')
    a(f'v_sin_f32 v{dst+1}, v{t1}')
    a('s_nop 0')
    a(f'v_mul_f32 v{dst}, v{dst}, v{t0}')
    a(f'v_mul_f32 v{dst+1}, v{dst+1}, v{t0}')

def cmul(a, d, x, y):
    assert d != x and d != y and d % 2 == 0 and x % 2 == 0 and y % 2 == 0
    a(f'v_pk_mul_f32 v[{d}:{d+1}], v[{x}:{x+1}], v[{y}:{y+1}] op_sel:[0,0] op_sel_hi:[1,0]')
    a(f'v_pk_fma_f32 v[{d}:{d+1}], v[{x}:{x+1}], v[{y}:{y+1}], v[{d}:{d+1}] op_sel:[1,1,0] op_sel_hi:[0,1,1] neg_lo:[1,0,0]')

def role_k(a, stf):
    RS = 288
    AOFF = 16 * RS
    WREG = 32 * RS
    a('k1_roleK:')
    stamp(a, 0)
    wave_id(a, 3, 1)
    a('s_load_dwordx4 s[4:7], s[0:1], 8')
    a('s_load_dwordx4 s[8:11], s[0:1], 24')
    a('s_load_dwordx2 s[12:13], s[0:1], 40')
    a('s_load_dwordx2 s[14:15], s[0:1], 120')
    a(f's_sub_u32 s61, s2, {K0}')
    a('s_cmp_eq_u32 s3, 3')
    a('s_cbranch_scc1 k1_kfin0')
    a('s_mul_i32 s40, s61, 192')
    a('v_add_u32 v1, s40, v0')
    a('v_lshlrev_b32 v1, 1, v1')
    a('s_lshl_b32 s41, s61, 1')
    a('v_mov_b32 v2, s41')
    a('s_waitcnt lgkmcnt(0)')
    srd(a, 16, 4, 640*192*2); srd(a, 20, 6, 640*192*2); srd(a, 24, 8, 640*192*2); srd(a, 28, 10, 640*192*2)
    srd(a, 32, 12, 640*2)
    a('buffer_load_ushort v3, v2, s[32:35], 0 offen')
    a('buffer_load_ushort v4, v1, s[16:19], 0 offen')
    a('buffer_load_ushort v5, v1, s[20:23], 0 offen')
    a('buffer_load_ushort v10, v1, s[24:27], 0 offen')
    a('buffer_load_ushort v11, v1, s[28:31], 0 offen')
    a(f's_mul_i32 s42, s3, {WREG}')
    a('v_and_b32 v6, 63, v0')
    a('v_and_b32 v7, 15, v6')
    a('v_lshrrev_b32 v8, 4, v6')
    a(f'v_mul_u32_u24 v9, {RS}, v7')
    a('v_lshl_add_u32 v9, v8, 4, v9')
    stamp(a, 1)
    a('s_waitcnt vmcnt(0)')
    stamp(a, 2)
    a('v_add_u32 v2, s42, v9')
    a('s_mov_b32 m0, s42')
    a('s_nop 0')
    import kgen
    kgen.kgen(a)
    a('s_waitcnt lgkmcnt(0)')
    a('s_barrier')
    stamp(a, 3)
    a('s_branch k1_kfin1')
    a('k1_kfin0:')
    a('s_waitcnt lgkmcnt(0)')
    a('s_barrier')
    import os
    WP = os.environ.get('WPF', 'gu')
    if WP:
        a('s_load_dwordx4 s[64:67], s[0:1], 64')
        a('s_load_dwordx2 s[68:69], s[0:1], 80')
        a('v_and_b32 v5, 63, v0')
        a('v_lshlrev_b32 v5, 4, v5')
        a('s_mul_i32 s70, s61, 3072')
        a('s_waitcnt lgkmcnt(0)')
        for ch, b in (('g', 64), ('u', 66), ('d', 68)):
            if ch not in WP: continue
            srd(a, 72, b, 640*3072)
            for i in range(3):
                a(f'buffer_load_dwordx4 v[8:11], v5, s[72:75], s70 offen offset:{1024*i}')
    a('k1_kfin1:')
    srd(a, 36, 14, Y.SZ['KX'], Y.KX)
    TBL = 3 * WREG - 2048 + 0
    TBL = 27648 - 1312
    a('v_lshlrev_b32 v3, 3, v0')
    a('v_cvt_f32_u32 v32, v3')
    for i in range(1, 8): a(f'v_add_f32 v{32+i}, {f32(float(i))}, v32')
    for i in range(4): a(f'v_cvt_pk_bf16_f32 v{40+i}, v{32+2*i}, v{33+2*i}')
    a(f's_mov_b32 s50, {hex((TBL - 0x8500) & 0xffffffff)}')
    for i in range(4):
        a(f'v_and_b32 v{32+2*i}, 0xffff, v{40+i}')
        a(f'v_lshrrev_b32 v{33+2*i}, 16, v{40+i}')
    for i in range(8): a(f'v_lshl_add_u32 v{32+i}, v{32+i}, 1, s50')
    a('v_lshlrev_b32 v4, 4, v0')
    a('v_cmp_gt_u32 vcc, 16, v0')
    a('s_and_saveexec_b64 s[52:53], vcc')
    for i in range(8): a(f'v_add_u32 v{32+i}, {TBL + 2*i}, v4')
    a('s_mov_b64 exec, s[52:53]')
    a('v_cmp_gt_u32 vcc, 161, v0')
    a('s_and_saveexec_b64 s[44:45], vcc')
    lab = a.label('k1_ns')
    a(f's_cbranch_execz {lab}')
    a('v_lshlrev_b32 v1, 4, v0')
    a(f'ds_read_b128 v[10:13], v1 offset:0')
    a(f'ds_read_b128 v[14:17], v1 offset:{WREG}')
    a(f'ds_read_b128 v[18:21], v1 offset:{2*WREG}')
    a('v_lshlrev_b32 v2, 3, v0')
    a('s_waitcnt lgkmcnt(0)')
    for r in range(4):
        a(f'v_add_f32 v{10+r}, v{10+r}, v{14+r}')
    for r in range(4):
        a(f'v_add_f32 v{10+r}, v{10+r}, v{18+r}')
    a('v_cvt_pk_f16_f32 v10, v10, v11')
    a('v_cvt_pk_f16_f32 v11, v12, v13')
    a(f'ds_write_b64 v2, v[10:11] offset:{TBL}')
    a(f'{lab}:')
    a('s_mov_b64 exec, s[44:45]')
    a('s_waitcnt lgkmcnt(0)')
    a('s_barrier')
    for i in range(8): a(f'ds_read_u16 v{48+i}, v{32+i}')
    a('s_lshl_b32 s40, s61, 12')
    a('s_waitcnt lgkmcnt(0)')
    for i in range(4): a(f'v_lshl_or_b32 v{40+i}, v{49+2*i}, 16, v{48+2*i}')
    a(f'buffer_store_dwordx4 v[40:43], v4, s[36:39], s40 offen {stf}')
    a('s_waitcnt vmcnt(0)') if __import__('asmgen').STAMPS else None
    stamp(a, 4)
    stamp_flush(a, 0, 5)
    a('s_endpgm')

def code_prefetch(a):
    import os
    if 'code' not in os.environ.get('WARM', 'code'): return
    lab = a.label('k1_nowarm')
    a('s_cmp_ge_u32 s2, 8')
    a(f's_cbranch_scc1 {lab}')
    a('s_getpc_b64 s[62:63]')
    a('k1_pc:')
    a('s_sub_u32 s62, s62, k1_pc-k1_kernel')
    a('s_subb_u32 s63, s63, 0')
    a('v_lshlrev_b32 v94, 7, v0')
    a('s_mov_b32 s64, code_end-k1_kernel')
    for i in range(2):
        l2 = a.label('k1_cp')
        a('v_cmp_gt_u32 vcc, s64, v94')
        a('s_and_saveexec_b64 s[66:67], vcc')
        a(f's_cbranch_execz {l2}')
        a('global_load_dword v95, v94, s[62:63]')
        a(f'{l2}:')
        a('s_mov_b64 exec, s[66:67]')
        a('v_add_u32 v94, 32768, v94')
    a(f'{lab}:')

def role_d(a, stf, base):
    a('; ---- role D: Wd fragment prep, q = s2-640')
    a('k1_roleD:')
    stamp(a, 0)
    RS = 672
    wave_id(a, 3, 1)
    a('s_load_dwordx2 s[4:5], s[0:1], 80')
    a('s_load_dwordx2 s[14:15], s[0:1], 120')
    a(f's_sub_u32 s40, s2, {base}')
    a('s_lshr_b32 s41, s40, 1')
    a('s_and_b32 s42, s40, 1')
    a('s_lshr_b32 s43, s41, 2')
    a('s_lshl_b32 s43, s43, 7')
    a('s_lshl_b32 s44, s41, 1')
    a('s_and_b32 s44, s44, 7')
    a('s_add_u32 s43, s43, s44')
    a('s_mul_i32 s43, s43, 1280')
    a('s_mul_i32 s44, s42, 640')
    a('s_add_u32 s43, s43, s44')
    a('v_and_b32 v2, 63, v0')
    a('s_waitcnt lgkmcnt(0)')
    srd(a, 16, 4, 1536*1280); srd(a, 20, 14, Y.SZ['WDP'], Y.WDP)
    for k in range(6):
        skip = a.label('k1d_skip')
        if k == 5:
            a('s_cmp_lg_u32 s3, 0')
            a(f's_cbranch_scc1 {skip}')
        a(f's_lshl_b32 s45, s3, 6')
        a(f's_add_u32 s45, s45, {256*k}')
        a('v_add_u32 v3, s45, v2')
        a('v_mul_u32_u24 v4, 1561, v3')
        a('v_lshrrev_b32 v4, 16, v4')
        a('v_mul_u32_u24 v5, 42, v4')
        a('v_sub_u32 v5, v3, v5')
        a('v_and_b32 v6, 3, v4')
        a('v_bfe_u32 v7, v4, 2, 1')
        a('v_lshl_add_u32 v6, v7, 2, v6')
        a('v_bfe_u32 v7, v4, 4, 1')
        a('v_lshl_add_u32 v6, v7, 3, v6')
        a('v_bfe_u32 v7, v4, 3, 1')
        a('v_lshl_add_u32 v6, v6, 3, v7')
        a('v_mul_u32_u24 v6, 1280, v6')
        a('v_lshl_add_u32 v6, v5, 4, v6')
        a('v_cmp_gt_u32 vcc, 40, v5')
        a('v_mov_b32 v7, 0x7ff00000')
        a('s_lshl_b32 s46, s45, 4')
        a('v_cndmask_b32 v6, v7, v6, vcc')
        a('s_mov_b32 m0, s46')
        a('s_nop 0')
        a('buffer_load_dwordx4 v6, s[16:19], s43 offen lds')
        if k == 5: a(f'{skip}:')
    a('v_lshrrev_b32 v3, 4, v2')
    a('v_bfe_u32 v4, v2, 2, 2')
    a('v_and_b32 v5, 3, v2')
    a('v_lshrrev_b32 v6, 1, v3')
    a('v_lshl_add_u32 v4, v6, 3, v4')
    a('v_and_b32 v6, 1, v3')
    a('v_lshl_add_u32 v4, v6, 2, v4')
    a(f'v_mul_u32_u24 v4, {RS}, v4')
    a('v_lshl_add_u32 v4, v5, 3, v4')
    a('s_mul_i32 s45, s3, 160')
    a('v_add_u32 v4, s45, v4')
    a('s_lshl_b32 s45, s42, 2')
    a('s_add_u32 s45, s45, s3')
    a('s_mul_i32 s45, s45, 48')
    a('s_add_u32 s45, s45, s41')
    a('s_mul_i32 s45, s45, 5120')
    a('v_lshlrev_b32 v5, 4, v2')
    a('v_add_u32 v5, s45, v5')
    a('s_movk_i32 s47, 4096')
    stamp(a, 1)
    a('s_waitcnt vmcnt(0)')
    stamp(a, 2)
    a('s_barrier')
    for m in range(5):
        a(f'ds_read_b64_tr_b16 v[{8+4*m}:{9+4*m}], v4 offset:{32*m}')
        a(f'ds_read_b64_tr_b16 v[{10+4*m}:{11+4*m}], v4 offset:{32*m + 16*RS}')
    for m in range(5):
        a(f's_waitcnt lgkmcnt({8-2*m})')
        if m < 4: a(f'buffer_store_dwordx4 v[{8+4*m}:{11+4*m}], v5, s[20:23], 0 offen offset:{1024*m} {stf}')
        else: a(f'buffer_store_dwordx4 v[{8+4*m}:{11+4*m}], v5, s[20:23], s47 offen {stf}')
    stamp(a, 3)
    a('s_waitcnt vmcnt(0)')
    stamp(a, 4)
    stamp_flush(a, 1, 5)
    a('s_endpgm')

def role_g(a, stf):
    a('; ---- role G: mod GEMV partials: WG = (64 columns, half of the rows)')
    a('k1_roleG:')
    stamp(a, 0)
    wave_id(a, 3, 1)
    a('s_load_dwordx4 s[4:7], s[0:1], 88')
    a('s_load_dwordx2 s[14:15], s[0:1], 120')
    a(f's_sub_u32 s40, s2, {G0}')
    a('s_lshr_b32 s41, s40, 1')
    a('s_and_b32 s40, s40, 1')
    a('v_and_b32 v1, 7, v0')
    a('v_lshrrev_b32 v2, 3, v0')
    a('s_mul_i32 s43, s40, 320')
    a('v_add_u32 v3, s43, v2')
    a('v_mul_u32_u24 v4, 7680, v3')
    a('v_lshl_add_u32 v4, v1, 4, v4')
    a('v_lshlrev_b32 v3, 1, v3')
    a('s_lshl_b32 s42, s41, 7')
    a('s_waitcnt lgkmcnt(0)')
    srd(a, 16, 4, 1280); srd(a, 20, 6, 640*7680); srd(a, 24, 14, Y.SZ['MOD'], Y.MOD)
    for i in range(10):
        a(f'buffer_load_ushort v{10+i}, v3, s[16:19], 0 offen offset:{64*i}')
    for i in range(10):
        a(f'buffer_load_dwordx4 v[{20+4*i}:{23+4*i}], v4, s[20:23], s42 offen')
        if i < 9: a(f's_add_u32 s42, s42, {32*7680}')
    stamp(a, 1)
    a('s_waitcnt vmcnt(10)') if False else None
    a('s_waitcnt vmcnt(10)')
    stamp(a, 2)
    for i in range(10):
        a(f'v_lshlrev_b32 v{10+i}, 16, v{10+i}')
    for i in range(10):
        a(f'v_mul_f32 v{60+i}, {f32(-LOG2E)}, v{10+i}')
    for i in range(10):
        a(f'v_exp_f32 v{60+i}, v{60+i}')
    for i in range(10):
        a(f'v_add_f32 v{60+i}, 1.0, v{60+i}')
    for i in range(10):
        a(f'v_rcp_f32 v{60+i}, v{60+i}')
    for i in range(10):
        a(f'v_mul_f32 v{10+i}, v{10+i}, v{60+i}')
    for i in range(10):
        a(f'v_cvt_pk_bf16_f32 v{60+i}, v{10+i}, v{10+i}')
    for i in range(10):
        a(f'v_lshlrev_b32 v{10+i}, 16, v{60+i}')
    ACC = 60
    for c in range(8): a(f'v_mov_b32 v{ACC+c}, 0')
    for i in range(10):
        a(f's_waitcnt vmcnt({9-i})')
        for k in range(4):
            a(f'v_lshlrev_b32 v70, 16, v{20+4*i+k}')
            a(f'v_and_b32 v71, 0xffff0000, v{20+4*i+k}')
            a(f'v_fmac_f32 v{ACC+2*k}, v{10+i}, v70')
            a(f'v_fmac_f32 v{ACC+2*k+1}, v{10+i}, v71')
    stamp(a, 3)
    a('s_nop 1')
    for c in range(8):
        a(f'v_add_f32_dpp v{ACC+c}, v{ACC+c}, v{ACC+c} row_shr:8 row_mask:0xf bank_mask:0xf bound_ctrl:0')
    a('v_lshrrev_b32 v2, 4, v0')
    a('v_lshlrev_b32 v2, 8, v2')
    a('v_lshl_add_u32 v2, v1, 5, v2')
    a('v_and_b32 v3, 15, v0')
    a('v_cmp_le_u32 vcc, 8, v3')
    a('s_and_saveexec_b64 s[44:45], vcc')
    a(f'ds_write_b128 v2, v[{ACC}:{ACC+3}]')
    a(f'ds_write_b128 v2, v[{ACC+4}:{ACC+7}] offset:16')
    a('s_mov_b64 exec, s[44:45]')
    a('s_waitcnt lgkmcnt(0)')
    a('s_barrier')
    a('v_cmp_gt_u32 vcc, 64, v0')
    a('s_and_saveexec_b64 s[44:45], vcc')
    a('s_cbranch_execz k1_exit')
    a('v_lshlrev_b32 v2, 2, v0')
    for p in range(16):
        a(f'ds_read_b32 v{10+p}, v2 offset:{256*p}')
    a('s_lshl_b32 s42, s41, 8')
    a('s_mul_i32 s43, s40, 15360')
    a('s_add_u32 s42, s42, s43')
    a('s_waitcnt lgkmcnt(0)')
    for st in (8, 4, 2, 1):
        for p in range(st):
            a(f'v_add_f32 v{10+p}, v{10+p}, v{10+p+st}')
    a(f'buffer_store_dword v10, v2, s[24:27], s42 offen {stf}')
    stamp(a, 4)
    a('s_waitcnt vmcnt(0)') if __import__('asmgen').STAMPS else None
    stamp(a, 5)
    stamp_flush(a, 0, 6)
    a('s_endpgm')

def role_s(a, stf):
    a('; ---- role S: LN1 stats')
    a('k1_roleS:')
    stamp(a, 0)
    a('s_load_dwordx2 s[4:5], s[0:1], 0')
    a('s_load_dwordx2 s[14:15], s[0:1], 120')
    a(f's_sub_u32 s40, s2, {S0}')
    a('s_lshl_b32 s40, s40, 4')
    a('v_lshrrev_b32 v1, 4, v0')
    a('v_add_u32 v1, s40, v1')
    a('v_and_b32 v2, 15, v0')
    a('v_mul_u32_u24 v3, 1280, v1')
    a('v_lshl_add_u32 v3, v2, 4, v3')
    a('s_waitcnt lgkmcnt(0)')
    srd(a, 16, 4, 2048*1280); srd(a, 20, 14, Y.SZ['ST1'], Y.ST1)
    for i in range(5):
        a(f'buffer_load_dwordx4 v[{4+4*i}:{7+4*i}], v3, s[16:19], 0 offen offset:{256*i}')
    X = 24
    stamp(a, 1)
    a('s_waitcnt vmcnt(0)') if __import__('asmgen').STAMPS else None
    stamp(a, 2)
    for i in range(5):
        a(f's_waitcnt vmcnt({4-i})')
        for k in range(4):
            a(f'v_lshlrev_b32 v{X+8*i+2*k}, 16, v{4+4*i+k}')
            a(f'v_and_b32 v{X+8*i+2*k+1}, 0xffff0000, v{4+4*i+k}')
    for c in range(4): a(f'v_add_f32 v{4+c}, v{X+c}, v{X+4+c}')
    for i in range(2, 10):
        for c in range(4): a(f'v_add_f32 v{4+c}, v{4+c}, v{X+4*i+c}')
    a('v_add_f32 v4, v4, v5')
    a('v_add_f32 v6, v6, v7')
    a('v_add_f32 v4, v4, v6')
    for sh in (8, 4, 2, 1):
        a('s_nop 1')
        a(f'v_add_f32_dpp v4, v4, v4 row_ror:{sh} row_mask:0xf bank_mask:0xf')
    a(f'v_mul_f32 v4, {f32(1/640)}, v4')
    for i in range(40): a(f'v_sub_f32 v{X+i}, v{X+i}, v4')
    for c in range(4): a(f'v_mul_f32 v{8+c}, v{X+c}, v{X+c}')
    for i in range(1, 10):
        for c in range(4): a(f'v_fmac_f32 v{8+c}, v{X+4*i+c}, v{X+4*i+c}')
    a('v_add_f32 v8, v8, v9')
    a('v_add_f32 v10, v10, v11')
    a('v_add_f32 v8, v8, v10')
    for sh in (8, 4, 2, 1):
        a('s_nop 1')
        a(f'v_add_f32_dpp v8, v8, v8 row_ror:{sh} row_mask:0xf bank_mask:0xf')
    a(f'v_mov_b32 v9, {f32(1e-5)}')
    a(f'v_fmac_f32 v9, {f32(1/640)}, v8')
    a('v_rsq_f32 v8, v9')
    a('v_lshlrev_b32 v3, 2, v1')
    a('v_mul_f32 v9, v8, v4')
    a('v_sub_f32 v9, 0, v9')
    a('v_cmp_eq_u32 vcc, 0, v2')
    a('s_and_saveexec_b64 s[44:45], vcc')
    a('s_cbranch_execz k1_exit')
    a('s_movk_i32 s46, 8192')
    a(f'buffer_store_dword v8, v3, s[20:23], 0 offen {stf}')
    a(f'buffer_store_dword v9, v3, s[20:23], s46 offen {stf}')
    stamp(a, 3)
    a('s_waitcnt vmcnt(0)')
    stamp(a, 4)
    stamp_flush(a, 0, 5)
    a('s_endpgm')

def role_t(a, stf):
    a('; ---- role T: transpose x -> XT')
    a('k1_roleT:')
    stamp(a, 0)
    wave_id(a, 3, 1)
    a('s_load_dwordx2 s[4:5], s[0:1], 0')
    a('s_load_dwordx2 s[14:15], s[0:1], 120')
    a(f's_sub_u32 s40, s2, {T0}')
    a('s_mul_i32 s41, s40, 13108')
    a('s_lshr_b32 s41, s41, 16')
    a('s_mul_i32 s42, s41, 5')
    a('s_sub_u32 s42, s40, s42')
    a('v_and_b32 v2, 63, v0')
    a('v_lshrrev_b32 v3, 4, v2')
    a('v_and_b32 v4, 15, v2')
    a('s_and_b32 s43, s3, 1')
    a('s_lshl_b32 s43, s43, 3')
    a('v_or_b32 v5, s43, v3')
    a('v_xor_b32 v5, v5, v4')
    a('v_xor_b32 v6, 4, v5')
    a('v_mul_u32_u24 v3, 1280, v3')
    a('v_lshl_add_u32 v5, v5, 4, v3')
    a('v_lshl_add_u32 v6, v6, 4, v3')
    a('s_lshl_b32 s43, s41, 6')
    a('s_lshl_b32 s44, s3, 4')
    a('s_add_u32 s43, s43, s44')
    a('s_mul_i32 s43, s43, 1280')
    a('s_lshl_b32 s45, s42, 8')
    a('s_add_u32 s43, s43, s45')
    a('s_lshl_b32 s44, s44, 8')
    a('s_waitcnt lgkmcnt(0)')
    srd(a, 16, 4, 2048*1280); srd(a, 20, 14, Y.SZ['XT'], Y.XT)
    for i in range(4):
        a('s_mov_b32 m0, s44')
        a('s_add_u32 s44, s44, 1024')
        a(f'buffer_load_dwordx4 v{5 if i < 2 else 6}, s[16:19], s43 offen lds')
        a(f's_add_u32 s43, s43, {4*1280}')
    a('v_lshrrev_b32 v3, 4, v2')
    a('v_bfe_u32 v4, v2, 2, 2')
    a('v_bfe_u32 v5, v2, 1, 1')
    a('v_and_b32 v6, 1, v2')
    a('v_lshl_add_u32 v7, v5, 3, v4')
    a('v_lshl_add_u32 v7, v3, 4, v7')
    a('v_lshl_add_u32 v8, v5, 2, v4')
    a('v_and_b32 v9, 1, v3')
    a('v_lshl_add_u32 v8, v9, 3, v8')
    a('s_lshl_b32 s45, s3, 2')
    a('v_xor_b32 v8, s45, v8')
    a('v_lshlrev_b32 v8, 4, v8')
    a('v_lshl_add_u32 v8, v7, 8, v8')
    a('v_lshl_add_u32 v8, v6, 3, v8')
    for u in range(1, 4): a(f'v_xor_b32 v{8+u}, {u<<4}, v8')
    a('v_and_b32 v4, 7, v2')
    a('v_lshlrev_b32 v4, 12, v4')
    a('v_bfe_u32 v5, v2, 3, 1')
    a('v_lshl_add_u32 v5, v3, 1, v5')
    a('v_lshl_add_u32 v4, v5, 4, v4')
    a('s_lshl_b32 s45, s42, 7')
    a('s_lshl_b32 s46, s3, 5')
    a('s_add_u32 s45, s45, s46')
    a('s_lshl_b32 s45, s45, 12')
    a('s_lshl_b32 s46, s41, 7')
    a('s_add_u32 s45, s45, s46')
    stamp(a, 1)
    a('s_waitcnt vmcnt(0)')
    stamp(a, 2)
    a('s_barrier')
    for u in range(4):
        a(f'ds_read_b64_tr_b16 v[{12+4*u}:{13+4*u}], v{8+u}')
        a(f'ds_read_b64_tr_b16 v[{14+4*u}:{15+4*u}], v{8+u} offset:1024')
    for u in range(4):
        a(f's_waitcnt lgkmcnt({6-2*u})')
        a(f'buffer_store_dwordx4 v[{12+4*u}:{15+4*u}], v4, s[20:23], s45 offen {stf}')
        if u < 3: a(f's_add_u32 s45, s45, {8*4096}')
    stamp(a, 3)
    a('s_waitcnt vmcnt(0)')
    stamp(a, 4)
    stamp_flush(a, 0, 5)
    a('s_endpgm')

def k1(a, stf=''):
    kernel_begin(a, 'k1_kernel')
    hstamp_start(a, 0)
    code_prefetch(a)
    import os
    only = os.environ.get('K1ONLY', 'KDGST')
    tgt = lambda r: f'k1_role{r}' if r in only else 'k1_exit'
    a(f's_cmp_lt_u32 s2, {G0}')
    a(f's_cbranch_scc1 {tgt("K")}')
    a(f's_cmp_lt_u32 s2, {T0}')
    a(f's_cbranch_scc1 {tgt("G")}')
    a(f's_cmp_lt_u32 s2, {S0}')
    a(f's_cbranch_scc1 {tgt("T")}')
    a(f's_cmp_lt_u32 s2, {K1_GRID}')
    a(f's_cbranch_scc1 {tgt("S")}')
    a('k1_exit:')
    a('s_endpgm')
    role_g(a, stf); role_t(a, stf); role_s(a, stf); role_k(a, stf)

if __name__ == '__main__':
    for q in range(160): assert (q * 13108) >> 16 == q // 5
    for s in range(1344): assert (s * 1561) >> 16 == s // 42
    print('ok')
```

```python
from asmgen import *
import layout as Y
K2_GRID = 856
C0, P0, D0 = 0, 640, 760
RBASE = 4160
RSTR = 1152
YBASE = 0
YSTR = 10240
K2_LDS = 4 * YSTR
K2_VGPR = 128

def role_conv(a, stf):
    a('; ---- conv role: d = s2-C0')
    a('k2_conv:')
    stamp(a, 0)
    wave_id(a, 3, 1)
    a('s_load_dwordx4 s[4:7], s[0:1], 40')
    a('s_load_dwordx2 s[14:15], s[0:1], 120')
    a(f's_sub_u32 s40, s2, {C0}')
    a('s_lshl_b32 s41, s40, 12')
    a('s_lshl_b32 s43, s40, 2')
    a('s_lshl_b32 s44, s40, 1')
    a('s_and_b32 s44, s44, 0xfffffffc')
    a('v_lshlrev_b32 v1, 4, v0')
    a('v_lshlrev_b32 v2, 5, v0')
    a('s_lshl_b32 s42, s3, 10')
    a('s_add_u32 s42, s42, 32')
    a('s_waitcnt lgkmcnt(0)')
    srd(a, 16, 14, Y.SZ['XT'], Y.XT); srd(a, 20, 14, Y.SZ['ST1'], Y.ST1); srd(a, 24, 14, Y.SZ['KX'], Y.KX); srd(a, 28, 14, Y.SZ['X1T'], Y.X1T)
    a('s_mov_b32 m0, s42')
    a('buffer_load_dwordx4 v[4:7], v1, s[16:19], s41 offen')
    a('buffer_load_dwordx4 v1, s[24:27], s41 offen lds')
    a('buffer_load_dwordx4 v[16:19], v2, s[20:23], 0 offen')
    a('buffer_load_dwordx4 v[20:23], v2, s[20:23], 0 offen offset:16')
    a('s_movk_i32 s46, 8192')
    a('buffer_load_dwordx4 v[24:27], v2, s[20:23], s46 offen')
    a('buffer_load_dwordx4 v[28:31], v2, s[20:23], s46 offen offset:16')
    a(f's_add_u32 s12, s14, {hex(Y.MOD)}')
    a('s_addc_u32 s13, s15, 0')
    for (dst, off) in ((45, 0), (46, 2560), (47, 5120)):
        a(f's_add_u32 s52, s43, {off}')
        a(f's_load_dword s{dst}, s[12:13], s52')
        a(f's_add_u32 s52, s43, {off + 15360}')
        a(f's_load_dword s{dst+10}, s[12:13], s52')
    a('s_load_dword s48, s[4:5], s44')
    a('s_load_dword s49, s[6:7], s44')
    a('v_mov_b32 v44, 0')
    a('v_lshrrev_b32 v45, 5, v0')
    a(f'v_mul_u32_u24 v45, {RSTR}, v45')
    a('v_and_b32 v46, 31, v0')
    a('v_lshl_add_u32 v45, v46, 2, v45')
    a('v_cmp_gt_u32 vcc, 128, v0')
    a('s_and_saveexec_b64 s[52:53], vcc')
    a(f'ds_write_b32 v45, v44 offset:{RBASE + 1024}')
    a('s_mov_b64 exec, s[52:53]')
    a('v_lshlrev_b32 v45, 2, v0')
    a('v_cmp_gt_u32 vcc, 8, v0')
    a('s_and_saveexec_b64 s[52:53], vcc')
    a('ds_write_b32 v45, v44')
    a('s_mov_b64 exec, s[52:53]')
    a('s_waitcnt lgkmcnt(0)')
    a('s_and_b32 s51, s40, 1')
    a('s_lshl_b32 s51, s51, 4')
    a('s_lshr_b32 s48, s48, s51')
    a('s_lshl_b32 s48, s48, 16')
    a('s_lshr_b32 s49, s49, s51')
    a('s_lshl_b32 s49, s49, 16')
    a('v_mov_b32 v46, s48')
    a(f'v_mul_f32 v46, {f32(1.4426950408889634)}, v46')
    a('v_exp_f32 v46, v46')
    for i, r in enumerate((45, 46, 47)):
        a(f'v_mov_b32 v{50+i}, s{r}')
        a(f'v_add_f32 v{50+i}, s{r+10}, v{50+i}')
    for i in range(3): bf16r(a, 50+i, 53)
    a('v_add_f32 v47, 1.0, v51')
    bf16r(a, 46, 48)
    bf16r(a, 47, 48)
    a('v_add_f32 v3, v46, v46')
    a('s_nop 0')
    a('v_readfirstlane_b32 s47, v52')
    stamp(a, 1)
    a('s_waitcnt vmcnt(0)')
    stamp(a, 2)
    for k in range(4):
        a(f'v_lshlrev_b32 v{8+2*k}, 16, v{4+k}')
        a(f'v_and_b32 v{9+2*k}, 0xffff0000, v{4+k}')
    for i in range(8): a(f'v_fma_f32 v{8+i}, v{8+i}, v{16+i}, v{24+i}')
    for i in range(8): a(f'v_fma_f32 v{8+i}, v{8+i}, v47, v50')
    a('v_lshlrev_b32 v45, 2, v0')
    a(f'v_sub_u32 v45, {RBASE + 1020}, v45')
    for c in range(4):
        a(f'v_cvt_pk_f16_f32 v{56+c}, v{12+c}, v{8+c}')
        a(f'ds_write_b32 v45, v{56+c} offset:{c*RSTR}')
    a('v_and_b32 v44, 63, v0')
    a('v_lshrrev_b32 v45, 4, v44')
    a('v_bfe_u32 v46, v44, 2, 2')
    a('v_and_b32 v47, 3, v44')
    a('v_add_u32 v46, v46, v47')
    a('v_lshlrev_b32 v46, 3, v46')
    a('v_lshl_add_u32 v1, v45, 6, v46')
    a('v_add_u32 v1, 8, v1')
    a('v_and_b32 v46, 15, v44')
    a(f's_mul_i32 s51, s3, {RSTR}')
    a(f's_add_u32 s51, s51, {RBASE + 1016 - 896}')
    a('v_lshlrev_b32 v47, 3, v46')
    a('v_sub_u32 v2, s51, v47')
    a('v_lshl_add_u32 v2, v45, 4, v2')
    a('s_waitcnt lgkmcnt(0)')
    a('s_barrier')
    stamp(a, 3)
    F, ACC, G = 16, 80, 112
    def rdF(w):
        a(f'ds_read_b64_tr_b16 v[{F+4*w}:{F+4*w+1}], v1 offset:{256*w}')
        a(f'ds_read_b64_tr_b16 v[{F+4*w+2}:{F+4*w+3}], v1 offset:{256*w+32}')
    def rdG(s):
        sl = (s + 1) % 4
        a(f'ds_read_b64 v[{G+4*sl}:{G+4*sl+1}], v2 offset:{64*(14-s)}')
        a(f'ds_read_b64 v[{G+4*sl+2}:{G+4*sl+3}], v2 offset:{64*(14-s)+8}')
    rdG(-1)
    for w in range(1, 16, 2): rdF(w)
    for w in (0, 2, 4, 6): rdF(w)
    a('s_waitcnt lgkmcnt(8)')
    started = set()
    def mf(t, w, sl):
        c = f'v[{ACC+4*t}:{ACC+4*t+3}]' if t in started else '0'
        started.add(t)
        a(f'v_mfma_f32_16x16x32_f16 v[{ACC+4*t}:{ACC+4*t+3}], v[{F+4*w}:{F+4*w+3}], v[{G+4*sl}:{G+4*sl+3}], {c}')
    fill = [lambda: rdF(8), lambda: rdF(10), lambda: rdF(12), lambda: rdF(14), lambda: rdG(0), lambda: rdG(1), lambda: rdG(2)]
    for t in range(8):
        mf(t, 2*t + 1, 0)
        if t < 7: fill[t]()
    rdG(3)
    for s in range(0, 15):
        later = min(3, 14 - s)
        a(f's_waitcnt lgkmcnt({2*later})')
        sl = (s + 1) % 4
        for t in range(8):
            w = 2*t - s
            if 0 <= w <= 15: mf(t, w, sl)
        if s + 4 <= 14: rdG(s + 4)
    stamp(a, 4)
    a('v_and_b32 v1, 15, v0')
    a('v_bfe_u32 v2, v0, 4, 2')
    a('v_mul_u32_u24 v1, 80, v1')
    a('v_lshl_add_u32 v1, v2, 4, v1')
    a(f's_mul_i32 s51, s3, {YSTR}')
    a(f's_add_u32 s51, s51, {YBASE}')
    a('v_add_u32 v1, s51, v1')
    a('s_waitcnt lgkmcnt(0)')
    a('s_barrier')
    for t in range(8):
        a(f'ds_write_b128 v1, v[{ACC+4*t}:{ACC+4*t+3}] offset:{1280*t}')
    a('v_lshrrev_b32 v1, 1, v0')
    a('v_mul_u32_u24 v1, 80, v1')
    a('v_and_b32 v2, 1, v0')
    a('v_lshl_add_u32 v1, v2, 5, v1')
    a('v_lshlrev_b32 v2, 4, v2')
    a('v_add_u32 v2, v1, v2')
    a('v_subrev_u32 v2, 32, v2')
    for c in range(1, 4):
        for r in range(4): a(f'v_mov_b32 v{16+12*c+r}, 0')
    a('s_waitcnt lgkmcnt(0)')
    a('s_barrier')
    stamp(a, 5)
    for c in range(4):
        a(f'ds_read_b128 v[{16+12*c+4}:{16+12*c+7}], v1 offset:{YBASE + c*YSTR}')
        a(f'ds_read_b128 v[{16+12*c+8}:{16+12*c+11}], v1 offset:{YBASE + c*YSTR + 16}')
    a('v_cmp_lt_u32 vcc, 0, v0')
    a('s_and_saveexec_b64 s[52:53], vcc')
    for c in range(1, 4):
        a(f'ds_read_b128 v[{16+12*c}:{16+12*c+3}], v2 offset:{YBASE + c*YSTR}')
    a('s_mov_b64 exec, s[52:53]')
    a('v_lshlrev_b32 v1, 4, v0')
    a('s_waitcnt lgkmcnt(0)')
    for i in range(8):
        a(f'v_add_f32 v{64+i}, v{16+4+i}, v{16+12+4+i-1}')
    for c in range(2, 4):
        for i in range(8):
            a(f'v_add_f32 v{64+i}, v{64+i}, v{16+12*c+4+i-c}')
    for i in range(8): a(f'v_mul_f32 v{64+i}, v{64+i}, v3')
    for i in range(8): a(f'v_fma_f32 v{64+i}, v{8+i}, s49, v{64+i}')
    for k in range(4):
        a(f'v_lshlrev_b32 v{72+2*k}, 16, v{4+k}')
        a(f'v_and_b32 v{73+2*k}, 0xffff0000, v{4+k}')
    for i in range(8): a(f'v_fma_f32 v{64+i}, v{64+i}, s47, v{72+i}')
    for k in range(4): a(f'v_cvt_pk_bf16_f32 v{72+k}, v{64+2*k}, v{65+2*k}')
    a(f'buffer_store_dwordx4 v[72:75], v1, s[28:31], s41 offen {stf}')
    stamp(a, 6)
    a('s_waitcnt vmcnt(0)')
    stamp(a, 7)
    stamp_flush(a, 1, 8)
    a('s_endpgm')

def role_p(a, stf):
    a('; ---- role P: W prep, q = s2 (<120)')
    a('k2_prep:')
    stamp(a, 0)
    wave_id(a, 3, 1)
    a('s_load_dwordx4 s[4:7], s[0:1], 64')
    a('s_load_dwordx2 s[14:15], s[0:1], 120')
    a(f's_sub_u32 s61, s2, {P0}')
    a('s_cmp_ge_u32 s61, 60')
    a('s_cselect_b32 s40, 1, 0')
    a('s_mul_i32 s41, s40, 60')
    a('s_sub_u32 s41, s61, s41')
    a('s_mul_i32 s42, s41, 6554')
    a('s_lshr_b32 s42, s42, 16')
    a('s_mul_i32 s43, s42, 10')
    a('s_sub_u32 s43, s41, s43')
    a('s_lshl_b32 s44, s43, 2')
    a('s_add_u32 s44, s44, s3')
    a('v_and_b32 v1, 63, v0')
    a('v_and_b32 v2, 31, v1')
    a('v_lshrrev_b32 v3, 5, v1')
    a(f'v_mul_u32_u24 v4, {8*3072}, v3')
    a('v_lshl_add_u32 v4, v2, 4, v4')
    a('v_lshlrev_b32 v5, 5, v3')
    a(f's_mul_i32 s45, s44, {16*3072}')
    a('s_lshl_b32 s46, s42, 9')
    a('s_add_u32 s45, s45, s46')
    a('s_lshl_b32 s46, s44, 6')
    a(f's_add_u32 s47, s46, {3*640*4}')
    a(f's_add_u32 s46, s46, {4*640*4}')
    a('s_waitcnt lgkmcnt(0)')
    a('s_cmp_eq_u32 s40, 0')
    a('s_cselect_b32 s4, s4, s6')
    a('s_cselect_b32 s5, s5, s7')
    srd(a, 16, 4, 640*3072); srd(a, 20, 14, Y.SZ['MOD'], Y.MOD); srd(a, 24, 14, Y.SZ['WP'], Y.WP); srd(a, 28, 14, Y.SZ['STP'], Y.STP)
    lab = a.label('k2_zf')
    a('s_cmp_lg_u32 s61, 0')
    a(f's_cbranch_scc1 {lab}')
    srd(a, 32, 14, Y.SZ['FLG'], Y.FLG)
    a('v_lshlrev_b32 v6, 4, v0')
    for r in range(4): a(f'v_mov_b32 v{8+r}, 0')
    for i in range(5):
        a(f'buffer_store_dwordx4 v[8:11], v6, s[32:35], 0 offen {stf}')
        a('v_add_u32 v6, 4096, v6')
    a('s_nop 1')
    a(f'{lab}:')
    a('buffer_load_dwordx4 v[8:11], v5, s[20:23], s46 offen')
    a('buffer_load_dwordx4 v[12:15], v5, s[20:23], s46 offen offset:16')
    a('buffer_load_dwordx4 v[16:19], v5, s[20:23], s47 offen')
    a('buffer_load_dwordx4 v[20:23], v5, s[20:23], s47 offen offset:16')
    a('s_add_u32 s46, s46, 15360')
    a('s_add_u32 s47, s47, 15360')
    a('buffer_load_dwordx4 v[108:111], v5, s[20:23], s46 offen')
    a('buffer_load_dwordx4 v[112:115], v5, s[20:23], s46 offen offset:16')
    a('buffer_load_dwordx4 v[116:119], v5, s[20:23], s47 offen')
    a('buffer_load_dwordx4 v[120:123], v5, s[20:23], s47 offen offset:16')
    Wr = 24
    for j in range(8):
        a(f'buffer_load_dwordx4 v[{Wr+4*j}:{Wr+4*j+3}], v4, s[16:19], s45 offen')
        if j < 7: a('s_add_u32 s45, s45, 3072')
    OUT, STv, TM = 56, 88, 104
    for q in range(16): a(f'v_mov_b32 v{STv+q}, 0')
    a('s_waitcnt vmcnt(8)')
    for j in range(16): a(f'v_add_f32 v{8+j}, v{8+j}, v{108+j}')
    for j in range(16):
        a(f'v_cvt_pk_bf16_f32 v{TM}, v{8+j}, v{8+j}')
        a(f'v_lshlrev_b32 v{8+j}, 16, v{TM}')
    for j in range(8): a(f'v_add_f32 v{8+j}, 1.0, v{8+j}')
    for j in range(8):
        a(f'v_cvt_pk_bf16_f32 v{TM}, v{8+j}, v{8+j}')
        a(f'v_lshlrev_b32 v{8+j}, 16, v{TM}')
    for jp in range(4):
        a(f's_waitcnt vmcnt({6-2*jp})')
        j0, j1 = 2*jp, 2*jp+1
        for k in range(4):
            a(f'v_lshlrev_b32 v{TM}, 16, v{Wr+4*j0+k}')
            a(f'v_and_b32 v{TM+1}, 0xffff0000, v{Wr+4*j0+k}')
            a(f'v_lshlrev_b32 v{TM+2}, 16, v{Wr+4*j1+k}')
            a(f'v_and_b32 v{TM+3}, 0xffff0000, v{Wr+4*j1+k}')
            a(f'v_fmac_f32 v{STv+4*k+1}, v{16+j0}, v{TM}')
            a(f'v_fmac_f32 v{STv+4*k+3}, v{16+j0}, v{TM+1}')
            a(f'v_fmac_f32 v{STv+4*k+1}, v{16+j1}, v{TM+2}')
            a(f'v_fmac_f32 v{STv+4*k+3}, v{16+j1}, v{TM+3}')
            a(f'v_mul_f32 v{TM}, v{8+j0}, v{TM}')
            a(f'v_mul_f32 v{TM+1}, v{8+j0}, v{TM+1}')
            a(f'v_mul_f32 v{TM+2}, v{8+j1}, v{TM+2}')
            a(f'v_mul_f32 v{TM+3}, v{8+j1}, v{TM+3}')
            a(f'v_add_f32 v{STv+4*k}, v{STv+4*k}, v{TM}')
            a(f'v_add_f32 v{STv+4*k+2}, v{STv+4*k+2}, v{TM+1}')
            a(f'v_add_f32 v{STv+4*k}, v{STv+4*k}, v{TM+2}')
            a(f'v_add_f32 v{STv+4*k+2}, v{STv+4*k+2}, v{TM+3}')
            a(f'v_cvt_pk_bf16_f32 v{OUT+4*(2*k)+jp}, v{TM}, v{TM+2}')
            a(f'v_cvt_pk_bf16_f32 v{OUT+4*(2*k+1)+jp}, v{TM+1}, v{TM+3}')
    a('v_and_b32 v6, 15, v1')
    a('v_lshlrev_b32 v6, 4, v6')
    a('v_lshl_add_u32 v6, v3, 9, v6')
    a('s_lshl_b32 s51, s40, 8')
    a('v_add_u32 v6, s51, v6')
    a('v_bfe_u32 v7, v1, 4, 1')
    a('v_cmp_eq_u32 vcc, 1, v7')
    for q in range(8):
        for hf in range(2):
            a('s_lshl_b32 s48, s42, 4')
            a(f's_add_u32 s48, s48, {8*hf + q}')
            a('s_mul_i32 s49, s48, 10923')
            a('s_lshr_b32 s49, s49, 16')
            a('s_mul_i32 s50, s49, 6')
            a('s_sub_u32 s50, s48, s50')
            a('s_mul_i32 s49, s49, 40')
            a('s_add_u32 s49, s49, s44')
            a('s_mul_i32 s49, s49, 6')
            a('s_add_u32 s49, s49, s50')
            a(f's_lshl_b32 s{52+hf}, s49, 10')
        a('v_mov_b32 v4, s52')
        a('v_mov_b32 v5, s53')
        a('v_cndmask_b32 v4, v4, v5, vcc')
        a('v_add_u32 v4, v4, v6')
        a(f'buffer_store_dwordx4 v[{OUT+4*q}:{OUT+4*q+3}], v4, s[24:27], 0 offen {stf}')
    a('s_lshl_b32 s48, s3, 12')
    a('v_lshlrev_b32 v5, 11, v3')
    a('v_lshl_add_u32 v5, v2, 6, v5')
    a('v_add_u32 v5, s48, v5')
    for k in range(4):
        a(f'ds_write_b128 v5, v[{STv+4*k}:{STv+4*k+3}] offset:{16*k}')
    a('s_waitcnt lgkmcnt(0)')
    a('s_barrier')
    a('v_lshlrev_b32 v5, 3, v0')
    for p in range(8):
        a(f'ds_read_b64 v[{8+2*p}:{9+2*p}], v5 offset:{2048*p}')
    a('v_and_b32 v24, 7, v0')
    a('v_lshrrev_b32 v26, 7, v0')
    a('v_lshl_add_u32 v24, v26, 3, v24')
    a('s_lshl_b32 s48, s42, 4')
    a('v_add_u32 v24, s48, v24')
    a('v_mul_u32_u24 v25, 10923, v24')
    a('v_lshrrev_b32 v25, 16, v25')
    a('v_mul_u32_u24 v26, 6, v25')
    a('v_sub_u32 v26, v24, v26')
    a('s_lshl_b32 s48, s43, 4')
    a('v_add_u32 v25, s48, v25')
    a('v_mul_u32_u24 v25, 192, v25')
    a('v_lshl_add_u32 v25, v26, 5, v25')
    a('v_bfe_u32 v26, v0, 3, 4')
    a('v_add_u32 v25, v25, v26')
    a('s_lshl_b32 s48, s40, 4')
    a('v_add_u32 v25, s48, v25')
    a('v_lshlrev_b32 v25, 3, v25')
    a('s_waitcnt lgkmcnt(0)')
    for st in (4, 2, 1):
        for p in range(st):
            a(f'v_add_f32 v{8+2*p}, v{8+2*p}, v{8+2*(p+st)}')
            a(f'v_add_f32 v{9+2*p}, v{9+2*p}, v{9+2*(p+st)}')
    a(f'buffer_store_dwordx2 v[8:9], v25, s[28:31], 0 offen {stf}')
    stamp(a, 1)
    a('s_waitcnt vmcnt(0)')
    stamp(a, 2)
    stamp_flush(a, 1, 3)
    a('s_endpgm')

def k2(a, stf=''):
    kernel_begin(a, 'k2_kernel')
    hstamp_start(a, 1)
    a(f's_cmp_lt_u32 s2, {P0}')
    a('s_cbranch_scc1 k2_conv')
    a(f's_cmp_lt_u32 s2, {D0}')
    a('s_cbranch_scc1 k2_prep')
    a(f's_cmp_lt_u32 s2, {K2_GRID}')
    a('s_cbranch_scc1 k1_roleD')
    a('k2_exit:')
    a('s_endpgm')
    role_conv(a, stf); role_p(a, stf)
    import k1
    k1.role_d(a, stf, D0)
if __name__ == '__main__':
    for q in range(60): assert (q * 6554) >> 16 == q // 10
    for q in range(96): assert (q * 10923) >> 16 == q // 6
    print('ok')
```

```python
from asmgen import *
import asmgen, os
import layout as Y
ABL = os.environ.get('K3ABL', '').split(',')
K3_GRID = 256
K3_BLOCK = 512
NSLOT = 7
SLOT = 20480
FOLDA = NSLOT * SLOT
FOLDB = FOLDA + 6144
RARR = FOLDB + 4096
K3_LDS = RARR + 1024
PART = 0
K3_VGPR = 168
K3_ACC = 168
LOG2E = 1.4426950408889634
GC0 = -2 * 0.7978845608028654 * LOG2E
GC1 = GC0 * 0.044715
WA, TA_, WB, TB_, ACC = 20, 32, 40, 52, 64

def reads(W, T_, vW, vT0, vT1, sub):
    r = []
    if 'noreads' in ABL: return r
    for n, vT in enumerate((vT0, vT1)):
        r.append(f'ds_read_b64_tr_b16 v[{T_+4*n}:{T_+4*n+1}], v{vT} offset:{sub*4096}')
        r.append(f'ds_read_b64_tr_b16 v[{T_+4*n+2}:{T_+4*n+3}], v{vT} offset:{sub*4096+1024}')
    for j in range(3):
        r.append(f'ds_read_b128 v[{W+4*j}:{W+4*j+3}], v{vW} offset:{8192 + (sub*6+j)*1024}')
    return [r[0], r[1], r[4], r[2], r[3], r[5], r[6]] if r else r

def mfmas(a, W, T_, fillers, first=False, lead=0):
    n = len(fillers); k = 0; idx = 0
    for j in range(3):
        for nn in range(2):
            acc = ACC + (2*j + nn)*16
            c = '0' if first else f'v[{acc}:{acc+15}]'
            if 'nomfma' not in ABL or first:
                a(f'v_mfma_f32_32x32x16_bf16 v[{acc}:{acc+15}], v[{W+4*j}:{W+4*j+3}], v[{T_+4*nn}:{T_+4*nn+3}], {c}')
            idx += 1
            upto = (n * idx + 4) // 5 if idx < 5 else n
            upto = min(upto, n)
            while k < upto:
                a(fillers[k]); k += 1

def mstats(T_):
    o = []
    if 'nostats' in ABL: return o
    for k in range(4):
        lo = 160 + 2*(k & 1)
        o.append(f'v_lshlrev_b32 v{lo}, 16, v{T_+k}')
        o.append(f'v_and_b32 v{lo+1}, 0xffff0000, v{T_+k}')
        o.append(f'v_add_f32 v10, v10, v{lo}')
        o.append(f'v_add_f32 v11, v11, v{lo+1}')
        o.append(f'v_fmac_f32 v12, v{lo}, v{lo}')
        o.append(f'v_fmac_f32 v13, v{lo+1}, v{lo+1}')
    return o
def weave(rd, st):
    o = []; i = j = 0
    while i < len(rd) or j < len(st):
        if i < len(rd): o.append(rd[i]); i += 1
        for _ in range(3):
            if j < len(st): o.append(st[j]); j += 1
    return o

def mstep(a, first=False, last=False, bar=True):
    if not first: a('s_waitcnt lgkmcnt(0)')
    if bar and ('nobar' not in ABL or first): a('s_barrier')
    if first:
        stamp(a, 2)
        for r in reads(WA, TA_, 4, 3, 9, 0): a(r)
        a('v_mov_b32 v1, v3'); a('v_mov_b32 v8, v9'); a('v_mov_b32 v2, v4')
        a(f's_mov_b32 s47, {SLOT}')
        a('v_add_u32 v3, s47, v5'); a('v_add_u32 v9, s47, v7'); a('v_add_u32 v4, s47, v6')
        a('s_waitcnt lgkmcnt(0)')
    mfmas(a, WA, TA_, weave(reads(WB, TB_, 2, 1, 8, 1), mstats(TA_)), first)
    a('s_waitcnt lgkmcnt(0)')
    f = mstats(TB_)
    if not last:
        f = weave(reads(WA, TA_, 4, 3, 9, 0), mstats(TB_))
        f += ['v_mov_b32 v1, v3', 'v_mov_b32 v8, v9', 'v_mov_b32 v2, v4',
              f's_add_u32 s47, s47, {SLOT}', f's_cmp_eq_u32 s47, {NSLOT*SLOT}', 's_cselect_b32 s47, 0, s47',
              'v_add_u32 v3, s47, v5', 'v_add_u32 v9, s47, v7', 'v_add_u32 v4, s47, v6']
    mfmas(a, WB, TB_, f)

def mfma_path(a, stf):
    a('v_and_b32 v16, 63, v0')
    a('s_lshr_b32 s56, s3, 1')
    a('s_and_b32 s57, s3, 1')
    a('v_lshlrev_b32 v6, 4, v16')
    a('s_mul_i32 s44, s57, 3072')
    a('v_add_u32 v6, s44, v6')
    a('v_lshrrev_b32 v11, 5, v16')
    a('v_bfe_u32 v12, v16, 2, 2')
    a('v_lshl_add_u32 v13, v11, 3, v12')
    a('v_bfe_u32 v14, v16, 4, 1')
    a('v_bfe_u32 v15, v16, 1, 1')
    a('v_lshl_add_u32 v14, v14, 1, v15')
    a('s_lshl_b32 s44, s56, 3')
    a('v_add_u32 v14, s44, v14')
    a('v_lshlrev_b32 v15, 2, v12')
    a('v_xor_b32 v14, v14, v15')
    a('v_lshlrev_b32 v14, 4, v14')
    a('v_lshl_add_u32 v14, v13, 8, v14')
    a('v_and_b32 v15, 1, v16')
    a('v_lshl_add_u32 v5, v15, 3, v14')
    a('s_lshl_b32 s44, s57, 6')
    a('v_xor_b32 v5, s44, v5')
    a('v_xor_b32 v7, 64, v5')
    for r in range(10, 14): a(f'v_mov_b32 v{r}, 0')
    a('v_mov_b32 v3, v5'); a('v_mov_b32 v9, v7'); a('v_mov_b32 v4, v6')
    stamp(a, 1)
    mstep(a, first=True)
    stamp(a, 2) if False else None
    if 'bar2' in ABL:
        mstep(a, bar=False)
        a('s_mov_b32 s48, 8')
        a('k3_mloop:')
        mstep(a); mstep(a, bar=False)
        a('s_sub_u32 s48, s48, 1')
        a('s_cmp_lg_u32 s48, 0')
        a('s_cbranch_scc1 k3_mloop')
        mstep(a); mstep(a, last=True, bar=False)
    else:
        a('s_mov_b32 s48, 18')
        a('k3_mloop:')
        mstep(a)
        a('s_sub_u32 s48, s48, 1')
        a('s_cmp_lg_u32 s48, 0')
        a('s_cbranch_scc1 k3_mloop')
        mstep(a, last=True)
    stamp(a, 3)
    a('v_add_f32 v10, v10, v11')
    a('v_add_f32 v12, v12, v13')
    a('v_mov_b32 v11, v10')
    a('v_mov_b32 v13, v12')
    a('s_nop 1')
    a('v_permlane32_swap_b32 v10, v11')
    a('v_permlane32_swap_b32 v12, v13')
    a('s_nop 1')
    a('v_add_f32 v10, v10, v11')
    a('v_add_f32 v12, v12, v13')
    a(f'v_mul_f32 v10, {f32(-1/640)}, v10')
    a(f'v_mul_f32 v12, {f32(1/640)}, v12')
    a('v_fma_f32 v12, -v10, v10, v12')
    a('v_max_f32 v12, 0, v12')
    a(f'v_add_f32 v12, {f32(1e-5)}, v12')
    a('v_sqrt_f32 v13, v12')
    a('v_rsq_f32 v11, v12')
    a('v_cvt_pk_bf16_f32 v20, v10, v10')
    a('v_cvt_pk_bf16_f32 v21, v13, v13')
    a('v_and_b32 v20, 0xffff0000, v20')
    a('v_and_b32 v21, 0xffff0000, v21')
    a('v_sub_f32 v20, v10, v20')
    a('v_sub_f32 v21, v13, v21')
    a('v_cvt_pk_bf16_f32 v24, v10, v20')
    a('v_cvt_pk_bf16_f32 v25, v10, v13')
    a('v_cvt_pk_bf16_f32 v26, v21, v13')
    a('v_mov_b32 v27, 0')
    a('v_cmp_gt_u32 vcc, 32, v16')
    a('s_nop 1')
    for k in range(3): a(f'v_cndmask_b32 v{24+k}, 0, v{24+k}, vcc')
    a('s_lshl_b32 s44, s56, 1')
    a('s_add_u32 s44, s44, s57')
    a('s_lshl_b32 s45, s44, 10')
    a(f's_add_u32 s45, s45, {FOLDB}')
    a('v_lshlrev_b32 v1, 4, v16')
    a('v_add_u32 v2, s45, v1')
    a('ds_write_b128 v2, v[24:27]')
    a('v_and_b32 v3, 31, v16')
    a('v_lshlrev_b32 v3, 3, v3')
    a('s_lshl_b32 s45, s44, 8')
    a(f's_add_u32 s45, s45, {RARR}')
    a('v_add_u32 v4, s45, v3')
    a('v_mov_b32 v10, v11')
    a('v_mov_b32 v11, v12')
    a('ds_write_b64 v4, v[10:11]')
    a('s_xor_b32 s44, s44, 1')
    a('s_lshl_b32 s45, s44, 10')
    a(f's_add_u32 s45, s45, {FOLDB}')
    a('v_add_u32 v5, s45, v1')
    a('s_lshl_b32 s45, s44, 8')
    a(f's_add_u32 s45, s45, {RARR}')
    a('v_add_u32 v4, s45, v3')
    a('s_mul_i32 s44, s57, 3072')
    a(f's_add_u32 s44, s44, {FOLDA}')
    a('v_add_u32 v2, s44, v1')
    for k in range(4): a(f'v_mov_b32 v{TA_+k}, v{24+k}')
    a('s_waitcnt lgkmcnt(0)')
    a('s_barrier')
    a(f'ds_read_b128 v[{TA_+4}:{TA_+7}], v5')
    for j in range(3): a(f'ds_read_b128 v[{WA+4*j}:{WA+4*j+3}], v2 offset:{1024*j}')
    a('ds_read_b64 v[12:13], v4')
    a('v_bfe_u32 v2, v16, 4, 1')
    a('v_lshlrev_b32 v2, 10, v2')
    a('v_lshrrev_b32 v9, 5, v16')
    a('v_lshl_add_u32 v2, v9, 8, v2')
    a('v_and_b32 v3, 15, v16')
    a('v_lshl_add_u32 v2, v3, 4, v2')
    a('s_lshl_b32 s44, s40, 1')
    a('s_add_u32 s44, s44, s56')
    a('s_mul_i32 s44, s44, 196608')
    a('s_mul_i32 s45, s41, 6')
    a('s_mul_i32 s46, s57, 3')
    a('s_add_u32 s45, s45, s46')
    a('s_waitcnt lgkmcnt(0)')
    mfmas(a, WA, TA_, [])
    for n in range(2):
        r = 10 + 2*n
        a(f'v_mul_f32 v{14+2*n}, {f32(GC0)}, v{r}')
        a(f'v_mul_f32 v{15+2*n}, v{r}, v{r}')
        a(f'v_mul_f32 v{15+2*n}, v{15+2*n}, v{r}')
        a(f'v_mul_f32 v{15+2*n}, {f32(GC1)}, v{15+2*n}')
    a('s_nop 7')
    stamp(a, 4)
    TM = 20
    for jj in range(3):
        a(f's_add_u32 s46, s45, {jj}')
        a('s_lshr_b32 s47, s46, 1')
        a('s_lshl_b32 s47, s47, 12')
        a('s_and_b32 s46, s46, 1')
        a('s_lshl_b32 s46, s46, 9')
        a('s_add_u32 s47, s47, s46')
        a('s_add_u32 s47, s47, s44')
        a('s_lshl_b32 s46, s57, 11')
        a('s_xor_b32 s49, s46, 2048')
        a('s_add_u32 s49, s49, s47')
        a('s_add_u32 s47, s47, s46')
        a('s_mov_b32 s46, s49')
        for n in range(2):
            acc = ACC + (2*jj + n)*16
            G = [acc + e for e in range(8)]; U = [acc + 8 + e for e in range(8)]
            k0, k1, ir2 = 14 + 2*n, 15 + 2*n, 11 + 2*n
            for e in range(8): a(f'v_mul_f32 v{TM+e}, v{G[e]}, v{G[e]}')
            for e in range(8): a(f'v_fma_f32 v{TM+e}, v{TM+e}, v{k1}, v{k0}')
            for e in range(8): a(f'v_mul_f32 v{TM+e}, v{G[e]}, v{TM+e}')
            for e in range(8): a(f'v_exp_f32 v{TM+e}, v{TM+e}')
            for e in range(8): a(f'v_mul_f32 v{G[e]}, v{G[e]}, v{U[e]}')
            for e in range(8): a(f'v_fma_f32 v{TM+e}, v{TM+e}, v{ir2}, v{ir2}')
            for e in range(8): a(f'v_rcp_f32 v{TM+e}, v{TM+e}')
            a('s_nop 0')
            for e in range(8): a(f'v_mul_f32 v{G[e]}, v{G[e]}, v{TM+e}')
            o = 28 + 4*((2*jj + n) % 8)
            for k in range(4): a(f'v_cvt_pk_bf16_f32 v{o+k}, v{G[2*k]}, v{G[2*k+1]}')
            a(f'buffer_store_dwordx4 v[{o}:{o+3}], v2, s[28:31], s{47 if n == 0 else 46} offen {stf}')
    stamp(a, 5)
    a('s_waitcnt vmcnt(0)')
    stamp(a, 6)
    stamp_flush(a, 2, 7)
    a('s_endpgm')

def dma_stage():
    g = ['s_add_u32 m0, s46, s50', 's_add_u32 s49, s44, 16384', 'buffer_load_dwordx4 v7, s[16:19], s44 offen lds',
         's_add_u32 s52, s50, 1024', 's_add_u32 m0, s46, s52', 's_nop 0', 'buffer_load_dwordx4 v7, s[16:19], s49 offen lds',
         's_add_u32 m0, s46, s51', 's_add_u32 s44, s44, 131072', 'buffer_load_dwordx4 v8, s[20:23], s45 offen lds',
         'buffer_load_dwordx4 v8, s[20:23], s45 offen offset:1024 lds',
         'buffer_load_dwordx4 v8, s[20:23], s45 offen offset:2048 lds', 's_add_u32 s45, s45, 12288',
         f's_add_u32 s46, s46, {SLOT}', f's_cmp_eq_u32 s46, {NSLOT*SLOT}', 's_cselect_b32 s46, 0, s46']
    return g

def stats_half(half):
    o = []
    for k in range(4):
        d = 40 + 4*half + k
        lo = 48 + 2*(k & 1)
        if 'pk' in ABL:
            o.append(f'v_lshlrev_b32 v{lo}, 16, v{d}')
            o.append(f'v_and_b32 v{lo+1}, 0xffff0000, v{d}')
            o.append(f'v_pk_add_f32 v[{16+2*k}:{17+2*k}], v[{16+2*k}:{17+2*k}], v[{lo}:{lo+1}]')
            o.append(f'v_pk_fma_f32 v[{24+2*k}:{25+2*k}], v[{lo}:{lo+1}], v[{lo}:{lo+1}], v[{24+2*k}:{25+2*k}]')
        else:
            o.append(f'v_lshlrev_b32 v{lo}, 16, v{d}')
            o.append(f'v_and_b32 v{lo+1}, 0xffff0000, v{d}')
            o.append(f'v_add_f32 v{16+2*k}, v{16+2*k}, v{lo}')
            o.append(f'v_add_f32 v{17+2*k}, v{17+2*k}, v{lo+1}')
            o.append(f'v_fmac_f32 v{24+2*k}, v{lo}, v{lo}')
            o.append(f'v_fmac_f32 v{25+2*k}, v{lo+1}, v{lo+1}')
    return o

def hstats(a, dma=None):
    if dma:
        for x in dma_stage(): a(x)
    return
    d = dma_stage() if dma else []
    groups = []; cur = []
    for x in d:
        cur.append(x)
        if x.startswith('buffer_load'): groups.append(cur); cur = []
    if cur: groups[-1] = groups[-1] + cur
    if 'nostats' in ABL:
        for x in d: a(x)
        return
    a('v_add_u32 v2, s47, v1')
    a('ds_read_b128 v[40:43], v2')
    a('ds_read_b128 v[44:47], v2 offset:1024')
    a(f's_add_u32 s47, s47, {SLOT}')
    a(f's_cmp_eq_u32 s47, {NSLOT*SLOT}')
    a('s_cselect_b32 s47, 0, s47')
    def grp(i):
        if i < len(groups):
            for x in groups[i]: a(x)
    grp(0); grp(1)
    h0, h1 = stats_half(0), stats_half(1)
    n = len(h0) // 2
    a('s_waitcnt lgkmcnt(1)')
    for x in h0[:n]: a(x)
    grp(2)
    for x in h0[n:]: a(x)
    grp(3)
    a('s_waitcnt lgkmcnt(0)')
    for x in h1[:n]: a(x)
    grp(4)
    for x in h1[n:]: a(x)

def hstep(a, vm, ndma, nstats):
    if vm is not None and 'nodma' not in ABL: a(f's_waitcnt vmcnt({vm})')
    if 'nobar' not in ABL: a('s_barrier')
    use = 'nodma' not in ABL
    for i in range(ndma - 1):
        if use:
            for x in dma_stage(): a(x)
    hstats(a, dma=(use and ndma > 0))

def helper_path(a):
    if 'prio' in ABL: a('s_setprio 2')
    a('s_sub_u32 s58, s3, 4')
    a('v_and_b32 v9, 63, v0')
    a('v_lshrrev_b32 v10, 4, v9')
    a('v_and_b32 v11, 15, v9')
    a('v_lshlrev_b32 v12, 2, v10')
    a('v_xor_b32 v11, v11, v12')
    a('v_mov_b32 v15, v11')
    a('v_lshlrev_b32 v11, 4, v11')
    a('v_lshl_add_u32 v7, v10, 12, v11')
    a('v_lshlrev_b32 v8, 4, v9')
    a('s_lshl_b32 s44, s58, 11')
    a('v_add_u32 v1, s44, v8')
    a('s_lshl_b32 s44, s58, 15')
    a('s_lshl_b32 s45, s40, 8')
    a('s_add_u32 s44, s44, s45')
    a('s_mul_i32 s45, s41, 245760')
    a('s_mul_i32 s46, s58, 3072')
    a('s_add_u32 s45, s45, s46')
    a('s_lshl_b32 s50, s58, 11')
    a('s_add_u32 s51, s46, 8192')
    a('s_mov_b32 s46, 0')
    a('s_mov_b32 s47, 0')
    for st in range(2):
        for x in dma_stage(): a(x)
    a('s_cmp_eq_u32 s58, 3')
    a('s_cbranch_scc1 k3_nost')
    a('v_subrev_u32 v9, 256, v0')
    a('v_lshlrev_b32 v9, 3, v9')
    a('s_mul_i32 s53, s41, 1536')
    for kr in range(10):
        a(f'buffer_load_dwordx2 v[{64+2*kr}:{65+2*kr}], v9, s[24:27], s53 offen')
        a(f's_add_u32 s53, s53, {16*1536}')
    a('k3_nost:')
    for x in dma_stage(): a(x)
    for r in range(16, 32): a(f'v_mov_b32 v{r}, 0')
    if 'bar2' in ABL:
        for st in range(2):
            for x in dma_stage(): a(x)
        a('s_waitcnt vmcnt(10)')
        a('s_barrier')
        for st in range(2):
            for x in dma_stage(): a(x)
    else:
        a('s_waitcnt vmcnt(5)')
        a('s_barrier')
        for st in range(2):
            for x in dma_stage(): a(x)
    a('s_cmp_eq_u32 s58, 3')
    a('s_cbranch_scc1 k3_nost2')
    for p in range(5):
        a(f'v_add_f32 v{64+2*p}, v{64+2*p}, v{74+2*p}')
        a(f'v_add_f32 v{65+2*p}, v{65+2*p}, v{75+2*p}')
    for p in (1, 2, 3, 4):
        a(f'v_add_f32 v64, v64, v{64+2*p}')
        a(f'v_add_f32 v65, v65, v{65+2*p}')
    a('v_cvt_pk_bf16_f32 v66, v64, v64')
    a('v_cvt_pk_bf16_f32 v67, v65, v65')
    a('v_and_b32 v68, 0xffff0000, v66')
    a('v_and_b32 v69, 0xffff0000, v67')
    a('v_sub_f32 v68, v64, v68')
    a('v_sub_f32 v69, v65, v69')
    a('v_cvt_pk_bf16_f32 v70, v68, v65')
    a('v_cvt_pk_bf16_f32 v71, v65, v69')
    a('v_mov_b32 v72, v66'); a('v_mov_b32 v73, v70'); a('v_mov_b32 v74, v71'); a('v_mov_b32 v75, 0')
    a('v_subrev_u32 v9, 256, v0')
    a('v_lshrrev_b32 v10, 5, v9')
    a('v_lshlrev_b32 v10, 10, v10')
    a('v_and_b32 v11, 31, v9')
    a('v_lshl_add_u32 v10, v11, 4, v10')
    a(f'v_add_u32 v10, {FOLDA}, v10')
    a('ds_write_b128 v10, v[72:75]')
    for r in range(4): a(f'v_mov_b32 v{76+r}, 0')
    a('ds_write_b128 v10, v[76:79] offset:512')
    a('k3_nost2:')
    if 'bar2' in ABL:
        a('s_mov_b32 s48, 6')
        a('k3_hloop:')
        a('s_waitcnt vmcnt(10)')
        a('s_barrier')
        for st in range(2):
            for x in dma_stage(): a(x)
        a('s_sub_u32 s48, s48, 1')
        a('s_cmp_lg_u32 s48, 0')
        a('s_cbranch_scc1 k3_hloop')
        a('s_waitcnt vmcnt(10)')
        a('s_barrier')
        for x in dma_stage(): a(x)
        a('s_waitcnt vmcnt(5)')
        a('s_barrier')
        a('s_waitcnt vmcnt(0)')
        a('s_barrier')
    else:
        hstats(a); hstats(a)
        hstep(a, 10, 2, 1)
        hstep(a, 15, 2, 1)
        hstep(a, 20, 1, 1)
        a('s_mov_b32 s48, 10')
        a('k3_hloop:')
        hstep(a, 20, 1, 1)
        a('s_sub_u32 s48, s48, 1')
        a('s_cmp_lg_u32 s48, 0')
        a('s_cbranch_scc1 k3_hloop')
        a('s_mov_b32 s48, 0')
        a('k3_htail:')
        labs = [a.label('k3_w') for _ in range(5)]
        body = a.label('k3_tb')
        for i, vm in enumerate((20, 15, 10, 5, 0)):
            a(f's_cmp_lg_u32 s48, {i}')
            a(f's_cbranch_scc1 {labs[i]}')
            if 'nodma' not in ABL: a(f's_waitcnt vmcnt({vm})')
            a(f's_branch {body}')
            a(f'{labs[i]}:')
        a(f'{body}:')
        if 'nobar' not in ABL: a('s_barrier')
        hstats(a)
        a('s_add_u32 s48, s48, 1')
        a('s_cmp_lg_u32 s48, 5')
        a('s_cbranch_scc1 k3_htail')
        if 'nobar' not in ABL: a('s_barrier')
    a('s_barrier')
    a('s_endpgm')

def k3(a, stf=''):
    kernel_begin(a, 'k3_kernel')
    hstamp_start(a, 2)
    a('s_cmp_ge_u32 s2, 256')
    a('s_cbranch_scc1 k3_exit')
    stamp(a, 0)
    wave_id(a, 3, 1)
    a('s_load_dwordx2 s[14:15], s[0:1], 120')
    a('s_and_b32 s42, s2, 7')
    a('s_lshr_b32 s43, s2, 3')
    a('s_and_b32 s40, s42, 1')
    a('s_lshl_b32 s40, s40, 3')
    a('s_and_b32 s44, s43, 7')
    a('s_add_u32 s40, s40, s44')
    a('s_lshr_b32 s41, s42, 1')
    a('s_lshl_b32 s41, s41, 2')
    a('s_lshr_b32 s44, s43, 3')
    a('s_add_u32 s41, s41, s44')
    a('s_cmp_lt_u32 s3, 4')
    a('s_cbranch_scc0 k3_helper')
    a('s_waitcnt lgkmcnt(0)')
    srd(a, 28, 14, Y.SZ['ACT'], Y.ACT)
    mfma_path(a, stf)
    a('k3_helper:')
    a('s_waitcnt lgkmcnt(0)')
    srd(a, 16, 14, Y.SZ['X1T'], Y.X1T); srd(a, 20, 14, Y.SZ['WP'], Y.WP); srd(a, 24, 14, Y.SZ['STP'], Y.STP)
    helper_path(a)
    a('k3_exit:')
    a('s_endpgm')
```

```python
from asmgen import *
import asmgen, os
import layout as Y
ABL = os.environ.get('K3ABL', '').split(',')
K34_GRID = 256
K34_BLOCK = 512
NSLOT = 7
SLOT = 20480
FOLDA = NSLOT * SLOT
FOLDB = FOLDA + 3072
RARR = FOLDB + 2048
X1L = RARR + 1024
GPART = X1L
K34_LDS = X1L + 10240
RED = 0
K34_VGPR = 256
K34_ACC = 176
LOG2E = 1.4426950408889634
GC0 = -2 * 0.7978845608028654 * LOG2E
GC1 = GC0 * 0.044715
WA, TA_, WB, TB_, ACC = 20, 32, 40, 52, 64
SPIN = 1 << 22

class VM:
    def __init__(self, a): self.a = a; self.ops = []
    def op(self, text, tag, optional=False):
        self.a(text); self.ops.append((tag, optional))
    def note(self, tag, optional=False): self.ops.append((tag, optional))
    def wait(self, tag):
        last = max(i for i, (t, o) in enumerate(self.ops) if t == tag)
        n = sum(1 for (t, o) in self.ops[last+1:] if not o)
        assert n <= 63, (tag, n)
        self.a(f's_waitcnt vmcnt({n})')

def reads(W, T_, vW, vT0, vT1, sub):
    r = []
    for n, vT in enumerate((vT0, vT1)):
        r.append(f'ds_read_b64_tr_b16 v[{T_+4*n}:{T_+4*n+1}], v{vT} offset:{sub*4096}')
        r.append(f'ds_read_b64_tr_b16 v[{T_+4*n+2}:{T_+4*n+3}], v{vT} offset:{sub*4096+1024}')
    for j in range(3):
        r.append(f'ds_read_b128 v[{W+4*j}:{W+4*j+3}], v{vW} offset:{8192 + (sub*6+j)*1024}')
    return [r[0], r[1], r[4], r[2], r[3], r[5], r[6]]

def mfmas(a, W, T_, fillers, first=False):
    n = len(fillers); k = 0; idx = 0
    for j in range(3):
        for nn in range(2):
            acc = ACC + (2*j + nn)*16
            c = '0' if first else f'v[{acc}:{acc+15}]'
            a(f'v_mfma_f32_32x32x16_bf16 v[{acc}:{acc+15}], v[{W+4*j}:{W+4*j+3}], v[{T_+4*nn}:{T_+4*nn+3}], {c}')
            idx += 1
            upto = min(n, 2*idx) if idx < 6 else n
            while k < upto:
                a(fillers[k]); k += 1

def mstep(a, first=False, last=False, bar=True, midbar=False):
    if not first: a('s_waitcnt lgkmcnt(0)')
    if bar:
        trace(a, 170, 7)
        a('s_barrier')
        trace(a, 170, 7)
    if first:
        stamp(a, 2)
        for r in reads(WA, TA_, 4, 3, 9, 0): a(r)
        a('v_mov_b32 v1, v3'); a('v_mov_b32 v8, v9'); a('v_mov_b32 v2, v4')
        a(f's_mov_b32 s47, {SLOT}')
        a('v_add_u32 v3, s47, v5'); a('v_add_u32 v9, s47, v7'); a('v_add_u32 v4, s47, v6')
        a('s_waitcnt lgkmcnt(0)')
    mfmas(a, WA, TA_, reads(WB, TB_, 2, 1, 8, 1), first)
    a('s_waitcnt lgkmcnt(0)')
    if midbar:
        trace(a, 170, 7)
        a('s_barrier')
        trace(a, 170, 7)
    f = []
    if not last:
        f = reads(WA, TA_, 4, 3, 9, 0)
        f += ['v_mov_b32 v1, v3', 'v_mov_b32 v8, v9', 'v_mov_b32 v2, v4',
              f's_add_u32 s47, s47, {SLOT}', f's_cmp_eq_u32 s47, {NSLOT*SLOT}', 's_cselect_b32 s47, 0, s47',
              'v_add_u32 v3, s47, v5', 'v_add_u32 v9, s47, v7', 'v_add_u32 v4, s47, v6']
    mfmas(a, WB, TB_, f)

def slices(a, stf):
    a('v_and_b32 v10, 15, v16')
    a('v_lshlrev_b32 v10, 12, v10')
    a('v_lshrrev_b32 v11, 4, v16')
    a('s_lshl_b32 s44, s3, 2')
    a('v_add_u32 v11, s44, v11')
    a('v_lshl_add_u32 v10, v11, 4, v10')
    a('s_lshl_b32 s44, s41, 16')
    a('s_lshl_b32 s45, s40, 8')
    a('s_add_u32 s44, s44, s45')
    a('v_add_u32 v10, s44, v10')
    a('v_add_u32 v11, 0x100000, v10')
    a('v_add_u32 v12, 0x200000, v10')
    for i in range(3):
        a(f'buffer_load_dwordx4 v[{20+4*i}:{23+4*i}], v{10+i}, s[16:19], 0 offen')
    S = 32
    for i in range(3):
        a(f's_waitcnt vmcnt({2-i})')
        for k in range(4):
            d = 20 + 4*i + k
            a(f'v_lshlrev_b32 v48, 16, v{d}')
            a(f'v_and_b32 v49, 0xffff0000, v{d}')
            if i == 0:
                a(f'v_mov_b32 v{S+2*k}, v48'); a(f'v_mov_b32 v{S+2*k+1}, v49')
                a(f'v_mul_f32 v{S+8+2*k}, v48, v48'); a(f'v_mul_f32 v{S+8+2*k+1}, v49, v49')
            else:
                a(f'v_add_f32 v{S+2*k}, v{S+2*k}, v48'); a(f'v_add_f32 v{S+2*k+1}, v{S+2*k+1}, v49')
                a(f'v_fmac_f32 v{S+8+2*k}, v48, v48'); a(f'v_fmac_f32 v{S+8+2*k+1}, v49, v49')
    for sh in (8, 4, 2, 1):
        for q in range(16):
            a(f'v_add_f32_dpp v{S+q}, v{S+q}, v{S+q} row_ror:{sh} row_mask:0xf bank_mask:0xf')
    n = 16
    for bit in range(4):
        a(f'v_and_b32 v48, {1 << bit}, v16')
        a('v_cmp_ne_u32 vcc, 0, v48')
        a('s_nop 1')
        n //= 2
        for p in range(n): a(f'v_cndmask_b32 v{S+p}, v{S+2*p}, v{S+2*p+1}, vcc')
    a('v_lshlrev_b32 v10, 2, v0')
    a('s_lshl_b32 s44, s40, 4')
    a('s_add_u32 s44, s44, s41')
    a('s_lshl_b32 s44, s44, 10')
    a(f'buffer_store_dword v{S}, v10, s[68:71], s44 offen sc1')
    a('s_waitcnt vmcnt(0)')

def mfma_path(a, stf):
    if 'noprio' not in ABL: a('s_setprio 2')
    trace_init(a, 170, 7); trace(a, 170, 7)
    a('v_and_b32 v16, 63, v0')
    a('s_lshr_b32 s56, s3, 1')
    a('s_and_b32 s57, s3, 1')
    a('v_lshlrev_b32 v6, 4, v16')
    a('s_mul_i32 s44, s57, 3072')
    a('v_add_u32 v6, s44, v6')
    a('v_lshrrev_b32 v11, 5, v16')
    a('v_bfe_u32 v12, v16, 2, 2')
    a('v_lshl_add_u32 v13, v11, 3, v12')
    a('v_bfe_u32 v14, v16, 4, 1')
    a('v_bfe_u32 v15, v16, 1, 1')
    a('v_lshl_add_u32 v14, v14, 1, v15')
    a('s_lshl_b32 s44, s56, 3')
    a('v_add_u32 v14, s44, v14')
    a('v_lshlrev_b32 v15, 2, v12')
    a('v_xor_b32 v14, v14, v15')
    a('v_lshlrev_b32 v14, 4, v14')
    a('v_lshl_add_u32 v14, v13, 8, v14')
    a('v_and_b32 v15, 1, v16')
    a('v_lshl_add_u32 v5, v15, 3, v14')
    a('v_xor_b32 v7, 64, v5')
    a('v_mov_b32 v3, v5'); a('v_mov_b32 v9, v7'); a('v_mov_b32 v4, v6')
    stamp(a, 1)
    mstep(a, first=True)
    mstep(a, bar=False, midbar=True)
    a('s_mov_b32 s48, 8')
    a('k34_mloop:')
    mstep(a); mstep(a, bar=False)
    a('s_sub_u32 s48, s48, 1')
    a('s_cmp_lg_u32 s48, 0')
    a('s_cbranch_scc1 k34_mloop')
    mstep(a); mstep(a, last=True, bar=False)
    stamp(a, 3)
    a('v_and_b32 v1, 31, v16')
    a('v_lshlrev_b32 v3, 3, v1')
    a('v_lshlrev_b32 v1, 4, v1')
    a('s_mul_i32 s44, s57, 1536')
    a(f's_add_u32 s44, s44, {FOLDA}')
    a('v_add_u32 v2, s44, v1')
    a('s_lshl_b32 s44, s56, 10')
    a(f's_add_u32 s44, s44, {FOLDB}')
    a('v_add_u32 v1, s44, v1')
    a('s_lshl_b32 s44, s56, 9')
    a(f's_add_u32 s44, s44, {RARR}')
    a('v_add_u32 v3, s44, v3')
    for r in range(WA, TA_ + 8): a(f'v_mov_b32 v{r}, 0')
    trace(a, 170, 7)
    a('s_barrier')
    trace(a, 170, 7)
    a('s_mov_b32 exec_hi, 0')
    for n in range(2): a(f'ds_read_b128 v[{TA_+4*n}:{TA_+4*n+3}], v1 offset:{512*n}')
    for j in range(3): a(f'ds_read_b128 v[{WA+4*j}:{WA+4*j+3}], v2 offset:{512*j}')
    a('s_mov_b32 exec_hi, -1')
    a('ds_read_b64 v[10:11], v3')
    a('ds_read_b64 v[12:13], v3 offset:256')
    a('v_bfe_u32 v2, v16, 4, 1')
    a('v_lshlrev_b32 v2, 10, v2')
    a('v_lshrrev_b32 v9, 5, v16')
    a('v_lshl_add_u32 v2, v9, 8, v2')
    a('v_and_b32 v3, 15, v16')
    a('v_lshl_add_u32 v2, v3, 4, v2')
    a('s_lshl_b32 s44, s40, 1')
    a('s_add_u32 s44, s44, s56')
    a('s_mul_i32 s44, s44, 196608')
    a('s_mul_i32 s45, s41, 6')
    a('s_mul_i32 s46, s57, 3')
    a('s_add_u32 s45, s45, s46')
    a('s_waitcnt lgkmcnt(0)')
    mfmas(a, WA, TA_, [])
    KC = {0: (4, 6, 8), 1: (14, 16, 18)}
    for n in range(2):
        r = 10 + 2*n
        k0, k1, ir2 = KC[n]
        if n == 1: pass
        a(f'v_mul_f32 v{k0}, {f32(GC0)}, v{r}')
        a(f'v_mul_f32 v{k1}, v{r}, v{r}')
        a(f'v_mov_b32 v{ir2}, v{r+1}')
        a(f'v_mul_f32 v{k1}, v{k1}, v{r}')
        a(f'v_mul_f32 v{k1}, {f32(GC1)}, v{k1}')
    a('s_nop 7')
    stamp(a, 4)
    TM = 20
    for jj in range(3):
        a(f's_add_u32 s46, s45, {jj}')
        a('s_lshr_b32 s47, s46, 1')
        a('s_lshl_b32 s47, s47, 12')
        a('s_and_b32 s46, s46, 1')
        a('s_lshl_b32 s46, s46, 9')
        a('s_add_u32 s47, s47, s46')
        a('s_add_u32 s47, s47, s44')
        for n in range(2):
            acc = ACC + (2*jj + n)*16
            k0, k1, ir2 = KC[n]
            P = lambda b: f'v[{b}:{b+1}]'
            for e in range(0, 8, 2): a(f'v_pk_mul_f32 {P(TM+e)}, {P(acc+e)}, {P(acc+e)}')
            for e in range(0, 8, 2): a(f'v_pk_fma_f32 {P(TM+e)}, {P(TM+e)}, {P(k1)}, {P(k0)} op_sel_hi:[1,0,0]')
            for e in range(0, 8, 2): a(f'v_pk_mul_f32 {P(TM+e)}, {P(acc+e)}, {P(TM+e)}')
            for e in range(8): a(f'v_exp_f32 v{TM+e}, v{TM+e}')
            for e in range(0, 8, 2): a(f'v_pk_mul_f32 {P(acc+e)}, {P(acc+e)}, {P(acc+8+e)}')
            for e in range(0, 8, 2): a(f'v_pk_fma_f32 {P(TM+e)}, {P(TM+e)}, {P(ir2)}, {P(ir2)} op_sel_hi:[1,0,0]')
            for e in range(8): a(f'v_rcp_f32 v{TM+e}, v{TM+e}')
            a('s_nop 0')
            for e in range(0, 8, 2): a(f'v_pk_mul_f32 {P(acc+e)}, {P(acc+e)}, {P(TM+e)}')
            o = 28 + 4*(2*jj + n)
            for k in range(4): a(f'v_cvt_pk_bf16_f32 v{o+k}, v{acc+2*k}, v{acc+2*k+1}')
            a(f'buffer_store_dwordx4 v[{o}:{o+3}], v2, s[28:31], s47 offen offset:{2048*n} {stf}')
    stamp(a, 5)
    a('s_waitcnt vmcnt(0)')
    stamp(a, 6)
    a('s_lshl_b32 s44, s40, 1')
    a('s_add_u32 s44, s44, s56')
    a('s_lshl_b32 s44, s44, 2')
    a('s_lshr_b32 s45, s41, 2')
    a('s_add_u32 s44, s44, s45')
    a('s_lshl_b32 s44, s44, 7')
    a('s_add_u32 s44, s44, 2048')
    a('s_mov_b64 exec, 1')
    a('v_mov_b32 v10, s44')
    a('v_mov_b32 v11, 1')
    a('buffer_atomic_add v11, v10, s[32:35], 0 offen sc1')
    a('s_mov_b64 exec, -1')
    trace(a, 170, 7)
    a('s_barrier')
    trace(a, 170, 7)
    a('v_lshrrev_b32 v2, 3, v16') if False else None
    a('v_and_b32 v9, 63, v0')
    a('v_lshrrev_b32 v2, 3, v9')
    a('v_lshlrev_b32 v2, 12, v2')
    a('v_and_b32 v3, 7, v9')
    a('v_lshl_add_u32 v2, v3, 4, v2')
    a('s_and_b32 s50, s41, 7')
    a('s_mul_i32 s50, s50, 80')
    a('s_lshl_b32 s51, s3, 3')
    a('s_add_u32 s50, s50, s51')
    a('s_lshl_b32 s50, s50, 12')
    a('s_lshr_b32 s51, s41, 3')
    a('s_lshl_b32 s52, s40, 1')
    a('s_add_u32 s51, s51, s52')
    a('s_lshl_b32 s51, s51, 7')
    a('s_add_u32 s50, s50, s51')
    a('s_lshl_b32 s51, s3, 10')
    a(f's_add_u32 s51, s51, {X1L}')
    for k in range(3):
        skip = a.label('k34_skip')
        if k == 2:
            a('s_cmp_ge_u32 s3, 2')
            a(f's_cbranch_scc1 {skip}')
        a('s_mov_b32 m0, s51')
        a('s_add_u32 s51, s51, 4096')
        a('buffer_load_dwordx4 v2, s[16:19], s50 offen lds')
        a(f's_add_u32 s50, s50, {32*4096}')
        if k == 2: a(f'{skip}:')
    a('s_waitcnt vmcnt(0)')
    if asmgen.STAMPS:
        stamp(a, 7)
        stamp_flush(a, 2, 8)
        a('s_waitcnt vmcnt(0)')
    trace(a, 170, 7)
    trace_flush(a, 170, 0, 3)
    a('s_barrier')
    a('s_endpgm')

def dma_groups(tag):
    g = []
    g.append([('s_add_u32 m0, s46, s50', None), ('s_add_u32 s49, s44, 16384', None), ('buffer_load_dwordx4 v7, s[16:19], s44 offen lds', tag)])
    g.append([('s_add_u32 s52, s50, 1024', None), ('s_add_u32 m0, s46, s52', None), ('s_nop 0', None), ('buffer_load_dwordx4 v7, s[16:19], s49 offen lds', tag)])
    g.append([('s_add_u32 m0, s46, s51', None), ('s_add_u32 s44, s44, 131072', None), ('buffer_load_dwordx4 v8, s[20:23], s45 offen lds', tag)])
    g.append([('buffer_load_dwordx4 v8, s[20:23], s45 offen offset:1024 lds', tag)])
    g.append([('buffer_load_dwordx4 v8, s[20:23], s45 offen offset:2048 lds', tag), ('s_add_u32 s45, s45, 12288', None),
              ('s_add_u32 s4, s4, 1', None), ('s_cmp_eq_u32 s4, 20', None), ('s_cselect_b32 s4, 0, s4', None),
              (f's_cselect_b32 s49, {20*131072}, 0', None), (f's_cselect_b32 s52, {20*12288}, 0', None),
              ('s_sub_u32 s44, s44, s49', None), ('s_sub_u32 s45, s45, s52', None),
              (f's_add_u32 s46, s46, {SLOT}', None), (f's_cmp_eq_u32 s46, {NSLOT*SLOT}', None), ('s_cselect_b32 s46, 0, s46', None)])
    return g
def emit_group(vm, grp):
    for (t, tag) in grp:
        if tag: vm.op(t, tag)
        else: vm.a(t)
def dma_stage(vm, tag):
    for g in dma_groups(tag): emit_group(vm, g)
def weave_dma(vm, groups, chunks):
    n = len(groups); m = len(chunks); k = 0
    for i, g in enumerate(groups):
        emit_group(vm, g)
        upto = (m * (i + 1)) // n
        while k < upto:
            chunks[k](); k += 1

def wd_groups(slot):
    t = f'wdl{slot}'
    g = [[(f's_add_u32 s6, s54, {slot*5120}', None), (f's_add_u32 m0, s55, {slot*SLOT}', None), ('s_nop 0', None),
          ('buffer_load_dwordx4 v8, s[36:39], s6 offen lds', t)]]
    for m in range(1, 4): g.append([(f'buffer_load_dwordx4 v8, s[36:39], s6 offen offset:{1024*m} lds', t)])
    g.append([('s_add_u32 s6, s6, 4096', None), (f's_add_u32 m0, s55, {slot*SLOT + 4096}', None), ('s_nop 0', None),
              ('buffer_load_dwordx4 v8, s[36:39], s6 offen lds', t)])
    return g
def wd_lds(vm, slot):
    for g in wd_groups(slot): emit_group(vm, g)

WDR = 12
ACTR = 112
def poll(a, vm, off_expr_sgpr, target, tag):
    vm.op('buffer_load_dword v6, v5, s[32:35], 0 offen sc1', tag, optional=True)
def poll_check(a, vm, target, tag):
    last = max(i for i, (t, o) in enumerate(vm.ops) if t == tag)
    n = len(vm.ops[last+1:])
    a(f's_waitcnt vmcnt({n})')
    lp, done = a.label('k34_spin'), a.label('k34_pdone')
    a(f's_mov_b32 s59, {SPIN}')
    a(f'{lp}:')
    a('v_readfirstlane_b32 s60, v6')
    a(f's_cmp_ge_u32 s60, {target}')
    a(f's_cbranch_scc1 {done}')
    a('s_sub_u32 s59, s59, 1')
    a('s_cmp_eq_u32 s59, 0')
    a(f's_cbranch_scc1 {done}')
    a('s_sleep 1')
    a('buffer_load_dword v6, v5, s[32:35], 0 offen sc1')
    a('s_waitcnt vmcnt(0)')
    a(f's_branch {lp}')
    a(f'{done}:')

def hbar(a):
    trace(a, 1, 7)
    a('s_barrier')
    trace(a, 1, 7)
def trace_flush_h(a):
    if asmgen.TRACE:
        a('v_mov_b32 v2, v1')
        trace_flush(a, 2, 0, 3)

def helper_path(a, outf):
    vm = VM(a)
    trace_init(a, 1, 7); trace(a, 1, 7)
    PART = FOLDA
    a('s_sub_u32 s58, s3, 4')
    a('v_and_b32 v9, 63, v0')
    a('v_lshrrev_b32 v10, 4, v9')
    a('v_and_b32 v11, 15, v9')
    a('v_lshlrev_b32 v4, 2, v10')
    a('v_xor_b32 v11, v11, v4')
    a('v_mov_b32 v3, v11')
    a('v_lshlrev_b32 v11, 4, v11')
    a('v_lshl_add_u32 v7, v10, 12, v11')
    a('v_lshlrev_b32 v8, 4, v9')
    a('s_mul_i32 s4, s41, 5')
    a('s_lshr_b32 s4, s4, 2')
    a('s_mul_i32 s5, s41, 40')
    a('s_lshl_b32 s53, s4, 5')
    a('s_sub_u32 s5, s5, s53')
    a('s_lshl_b32 s44, s58, 15')
    a('s_lshl_b32 s45, s40, 8')
    a('s_add_u32 s44, s44, s45')
    a('s_lshl_b32 s53, s4, 17')
    a('s_add_u32 s44, s44, s53')
    a('s_mul_i32 s45, s41, 245760')
    a('s_mul_i32 s46, s58, 3072')
    a('s_add_u32 s45, s45, s46')
    a('s_mul_i32 s53, s4, 12288')
    a('s_add_u32 s45, s45, s53')
    a('s_lshl_b32 s50, s58, 11')
    a('s_add_u32 s51, s46, 8192')
    a('s_mov_b32 s46, 0')
    a('s_lshl_b32 s53, s40, 7')
    a('v_mov_b32 v5, s53')
    a('v_mov_b32 v6, 0')
    for st in range(4): dma_stage(vm, f'st{st}')
    a('s_and_b32 s54, s41, 7')
    a('s_mul_i32 s54, s54, 48')
    a('s_mul_i32 s55, s58, 12')
    a('s_add_u32 s54, s54, s55')
    a('s_mul_i32 s54, s54, 5120')
    a('s_mul_i32 s55, s58, 5120')
    for r in range(16, 32): a(f'v_mov_b32 v{r}, 0')
    vm.wait('st1'); hbar(a)
    def unit(i):
        def f():
            skip = a.label('k34_su')
            if i == 2:
                a('s_cmp_ge_u32 s58, 2'); a(f's_cbranch_scc1 {skip}')
            a('s_waitcnt lgkmcnt(0)') if False else None
            for k in range(4):
                d = 40 + 4*i + k
                a(f'v_lshlrev_b32 v56, 16, v{d}')
                a(f'v_and_b32 v57, 0xffff0000, v{d}')
                a(f'v_add_f32 v{16+2*k}, v{16+2*k}, v56')
                a(f'v_add_f32 v{17+2*k}, v{17+2*k}, v57')
                a(f'v_fmac_f32 v{24+2*k}, v56, v56')
                a(f'v_fmac_f32 v{25+2*k}, v57, v57')
            if i == 2: a(f'{skip}:')
        return f
    for i in range(3):
        a(f's_lshl_b32 s53, s58, 2'); a(f's_add_u32 s53, s53, {16*i}'); a('s_add_u32 s53, s53, s5')
        a('s_min_u32 s53, s53, 60')
        a('s_lshr_b32 s59, s53, 5'); a(f's_mul_i32 s59, s59, {SLOT}')
        a('s_and_b32 s53, s53, 31'); a('s_lshl_b32 s53, s53, 8'); a('s_add_u32 s53, s53, s59')
        a('v_add_u32 v2, s53, v8')
        a(f'ds_read_b128 v[{40+4*i}:{43+4*i}], v2')
    def part_write():
        a('v_lshrrev_b32 v10, 4, v9')
        a('s_lshl_b32 s53, s58, 2')
        a('v_add_u32 v10, s53, v10')
        a('v_lshlrev_b32 v10, 4, v10')
        a('v_add_u32 v10, v10, v3')
        a('v_lshlrev_b32 v10, 4, v10')
        a(f'v_add_u32 v10, {PART}, v10')
        for k in range(4): a(f'ds_write_b128 v10, v[{16+4*k}:{19+4*k}] offset:{4096*k}')
    nop = lambda: None
    dma_stage(vm, 'st4'); dma_stage(vm, 'st5')
    vm.wait('st2'); a('s_waitcnt lgkmcnt(0)'); hbar(a)
    weave_dma(vm, dma_groups('st6'), [nop, unit(0), nop, nop, nop])
    vm.wait('st4'); hbar(a)
    weave_dma(vm, dma_groups('st7') + dma_groups('st8'), [nop, unit(1), nop, nop, unit(2), nop, nop, part_write, nop, nop])
    vm.wait('st6'); a('s_waitcnt lgkmcnt(0)'); hbar(a)
    a('s_cmp_ge_u32 s58, 2')
    a('s_cbranch_scc1 k34_nopub')
    a('v_subrev_u32 v9, 256, v0')
    a('v_lshrrev_b32 v10, 3, v9')
    a('v_lshlrev_b32 v10, 4, v10')
    a('v_and_b32 v11, 3, v9')
    a('v_lshl_add_u32 v10, v11, 2, v10')
    a('v_bfe_u32 v11, v9, 2, 1')
    a('v_lshl_add_u32 v10, v11, 12, v10')
    a(f'v_add_u32 v10, {PART}, v10')
    for p in range(16):
        a(f'ds_read_b32 v{32+p}, v10 offset:{256*p}')
        a(f'ds_read_b32 v{48+p}, v10 offset:{256*p + 8192}')
    a('k34_nopub:')
    dma_stage(vm, 'st9')
    a('s_cmp_ge_u32 s58, 2')
    a('s_cbranch_scc1 k34_nopub2')
    a('s_waitcnt lgkmcnt(0)')
    for st in (8, 4, 2, 1):
        for p in range(st):
            a(f'v_add_f32 v{32+p}, v{32+p}, v{32+p+st}')
            a(f'v_add_f32 v{48+p}, v{48+p}, v{48+p+st}')
    a('v_mov_b32 v33, v48')
    a('v_lshlrev_b32 v10, 3, v9')
    a('s_lshl_b32 s53, s40, 4'); a('s_add_u32 s53, s53, s41'); a('s_lshl_b32 s53, s53, 10')
    vm.op('buffer_store_dwordx2 v[32:33], v10, s[68:71], s53 offen sc1', 'pub', optional=True)
    a('k34_nopub2:')
    dma_stage(vm, 'st10')
    vm.wait('st8'); hbar(a)
    def st_loads(k0, k1):
        lab = a.label('k34_nost')
        a('s_cmp_eq_u32 s58, 3')
        a(f's_cbranch_scc1 {lab}')
        a('v_subrev_u32 v11, 256, v0')
        a('v_lshlrev_b32 v11, 3, v11')
        a('s_mul_i32 s53, s41, 1536')
        a(f's_add_u32 s53, s53, {k0*16*1536}')
        for kr in range(k0, k1):
            vm.op(f'buffer_load_dwordx2 v[{64+2*kr}:{65+2*kr}], v11, s[24:27], s53 offen', 'ST', optional=True)
            a(f's_add_u32 s53, s53, {16*1536}')
        a(f'{lab}:')
    st_loads(0, 4)
    dma_stage(vm, 'st11'); dma_stage(vm, 'st12')
    vm.wait('st10'); hbar(a)
    lab = a.label('k34_c1')
    a('s_cmp_lg_u32 s58, 0')
    a(f's_cbranch_scc1 {lab}')
    a('s_mov_b64 exec, 1')
    a('v_mov_b32 v11, 1')
    vm.op('buffer_atomic_add v11, v5, s[32:35], 0 offen sc1', 'c1', optional=True)
    a('s_mov_b64 exec, -1')
    a(f'{lab}:')
    st_loads(4, 7)
    dma_stage(vm, 'st13'); dma_stage(vm, 'st14')
    vm.wait('st12'); hbar(a)
    st_loads(7, 10)
    dma_stage(vm, 'st15'); dma_stage(vm, 'st16')
    vm.wait('st14'); hbar(a)
    a('s_cmp_lg_u32 s58, 0')
    a('s_cbranch_scc1 k34_np1')
    poll(a, vm, 53, 16, 'p1')
    a('k34_np1:')
    dma_stage(vm, 'st17'); dma_stage(vm, 'st18')
    a('s_cmp_lg_u32 s58, 0')
    a('s_cbranch_scc1 k34_np2')
    poll_check(a, vm, 16, 'p1')
    a('k34_np2:')
    vm.wait('st16'); hbar(a)
    a('s_lshl_b32 s53, s40, 4')
    a('s_add_u32 s53, s53, s58')
    a('s_lshl_b32 s53, s53, 10')
    for i in range(4):
        vm.op(f'buffer_load_dwordx4 v[{32+4*i}:{35+4*i}], v8, s[68:71], s53 offen sc1', 'G')
        a('s_add_u32 s53, s53, 4096')
    dma_stage(vm, 'st19')
    a('s_cmp_eq_u32 s58, 3')
    a('s_cbranch_scc1 k34_nost2')
    for p in range(5):
        a(f'v_add_f32 v{64+2*p}, v{64+2*p}, v{74+2*p}')
        a(f'v_add_f32 v{65+2*p}, v{65+2*p}, v{75+2*p}')
    for p in (1, 2, 3, 4):
        a(f'v_add_f32 v64, v64, v{64+2*p}')
        a(f'v_add_f32 v65, v65, v{65+2*p}')
    a('v_cvt_pk_bf16_f32 v66, v64, v64')
    a('v_cvt_pk_bf16_f32 v67, v65, v65')
    a('v_and_b32 v68, 0xffff0000, v66')
    a('v_and_b32 v69, 0xffff0000, v67')
    a('v_sub_f32 v68, v64, v68')
    a('v_sub_f32 v69, v65, v69')
    a('v_mov_b32 v72, v66')
    a('v_cvt_pk_bf16_f32 v73, v68, v65')
    a('v_cvt_pk_bf16_f32 v74, v65, v69')
    a('v_mov_b32 v75, 0')
    a('v_subrev_u32 v11, 256, v0')
    a('v_lshlrev_b32 v10, 4, v11')
    a(f'v_add_u32 v10, {FOLDA}, v10')
    a('ds_write_b128 v10, v[72:75]')
    a('k34_nost2:')
    wd_lds(vm, 6)
    vm.wait('st18'); hbar(a)
    wd_lds(vm, 0)
    vm.wait('G')
    for i in range(1, 4):
        for k in range(4): a(f'v_add_f32 v{32+k}, v{32+k}, v{32+4*i+k}')
    a('s_lshl_b32 s53, s58, 10')
    a(f's_add_u32 s53, s53, {GPART}')
    a('v_add_u32 v10, s53, v8')
    a('ds_write_b128 v10, v[32:35]')
    wd_lds(vm, 1)
    vm.wait('st19'); a('s_waitcnt lgkmcnt(0)'); hbar(a)
    a('s_cmp_ge_u32 s58, 2')
    a('s_cbranch_scc1 k34_nofold0')
    a('v_subrev_u32 v9, 256, v0')
    a('v_lshlrev_b32 v10, 3, v9')
    a(f'v_add_u32 v10, {GPART}, v10')
    for p in range(4): a(f'ds_read_b64 v[{32+2*p}:{33+2*p}], v10 offset:{1024*p}')
    a('s_waitcnt lgkmcnt(0)')
    for b in (32, 33):
        a(f'v_add_f32 v{b}, v{b}, v{b+2}'); a(f'v_add_f32 v{b+4}, v{b+4}, v{b+6}'); a(f'v_add_f32 v{b}, v{b}, v{b+4}')
    a('v_mov_b32 v48, v33')
    a(f'v_mul_f32 v32, {f32(-1/640)}, v32')
    a(f'v_mul_f32 v48, {f32(1/640)}, v48')
    a('v_fma_f32 v48, -v32, v32, v48')
    a('v_max_f32 v48, 0, v48')
    a(f'v_add_f32 v48, {f32(1e-5)}, v48')
    a('v_sqrt_f32 v33, v48')
    a('v_rsq_f32 v34, v48')
    a('v_cvt_pk_bf16_f32 v35, v32, v32')
    a('v_cvt_pk_bf16_f32 v36, v33, v33')
    a('v_and_b32 v37, 0xffff0000, v35')
    a('v_and_b32 v38, 0xffff0000, v36')
    a('v_sub_f32 v37, v32, v37')
    a('v_sub_f32 v38, v33, v38')
    a('v_cvt_pk_bf16_f32 v40, v32, v37')
    a('v_cvt_pk_bf16_f32 v41, v32, v33')
    a('v_cvt_pk_bf16_f32 v42, v38, v33')
    a('v_mov_b32 v43, 0')
    a('v_lshlrev_b32 v10, 4, v9')
    a(f'v_add_u32 v10, {FOLDB}, v10')
    a('ds_write_b128 v10, v[40:43]')
    a('v_mov_b32 v35, v48')
    a('v_lshlrev_b32 v10, 3, v9')
    a(f'v_add_u32 v10, {RARR}, v10')
    a('ds_write_b64 v10, v[34:35]')
    a('k34_nofold0:')
    wd_lds(vm, 2); wd_lds(vm, 3)
    a('s_waitcnt lgkmcnt(0)')
    hbar(a)
    def wdr(j):
        b = WDR + 20*j
        a(f's_add_u32 s53, s54, {(7+j)*5120}')
        for m in range(4): vm.op(f'buffer_load_dwordx4 v[{b+4*m}:{b+4*m+3}], v8, s[36:39], s53 offen offset:{1024*m}', 'wdr')
        a('s_add_u32 s53, s53, 4096')
        vm.op(f'buffer_load_dwordx4 v[{b+16}:{b+19}], v8, s[36:39], s53 offen', 'wdr')
    for j in range(3): wdr(j)
    a('s_lshr_b32 s61, s41, 3')
    a('s_lshl_b32 s62, s40, 1')
    a('s_add_u32 s61, s61, s62')
    a('s_mul_i32 s62, s61, 48')
    a('s_mul_i32 s63, s58, 12')
    a('s_add_u32 s62, s62, s63')
    a('s_lshl_b32 s62, s62, 12')
    for tl in range(4):
        a(f's_add_u32 s63, s58, {tl}')
        a('s_and_b32 s63, s63, 3')
        a('s_lshl_b32 s63, s63, 10')
        a(f's_add_u32 s{72+tl}, s62, s63')
    a('v_add_u32 v4, s55, v8')
    a('s_lshl_b32 s53, s40, 1')
    a('s_lshr_b32 s6, s41, 3')
    a('s_add_u32 s53, s53, s6')
    a('s_lshl_b32 s53, s53, 2')
    a('s_add_u32 s53, s53, s58')
    a('s_lshl_b32 s53, s53, 7')
    a('s_add_u32 s53, s53, 2048')
    a('v_mov_b32 v5, s53')
    if asmgen.STAMPS: stamp(a, 0)
    hbar(a)
    wdr(3); wdr(4)
    wd_lds(vm, 4)
    a('buffer_load_dword v6, v5, s[32:35], 0 offen sc1')
    wd_lds(vm, 5)
    a('s_waitcnt vmcnt(5)')
    lp, done = a.label('k34_spin'), a.label('k34_pdone')
    a(f's_mov_b32 s59, {SPIN}')
    a(f'{lp}:')
    a('v_readfirstlane_b32 s60, v6')
    a('s_cmp_ge_u32 s60, 8')
    a(f's_cbranch_scc1 {done}')
    a('s_sub_u32 s59, s59, 1')
    a('s_cmp_eq_u32 s59, 0')
    a(f's_cbranch_scc1 {done}')
    a('s_sleep 2')
    a('buffer_load_dword v6, v5, s[32:35], 0 offen sc1')
    a('s_waitcnt vmcnt(0)')
    a(f's_branch {lp}')
    a(f'{done}:')
    trace(a, 1, 7)
    if asmgen.STAMPS: stamp(a, 1)
    Tof = lambda j: (7 + j) if j < 5 else (j - 5)
    def act_loads(j):
        b = ACTR + 16*(j % 4)
        o = []
        for tl in range(4):
            o.append((f's_add_u32 s63, s{72+tl}, {Tof(j)*4096}', None))
            o.append((f'buffer_load_dwordx4 v[{b+4*tl}:{b+4*tl+3}], v8, s[28:31], s63 offen sc1', f'a{j}'))
        return o
    def emit(lst):
        for (t, tag) in lst:
            if tag: vm.op(t, tag)
            else: a(t)
    for j in range(4): emit(act_loads(j))
    for j in range(12):
        vm.wait(f'a{j}')
        if j >= 5: a('s_waitcnt lgkmcnt(0)')
        if j == 0 and asmgen.STAMPS: stamp(a, 2)
        fill = []
        if 5 <= j + 4 <= 11 and j >= 1:
            jj = j + 4
            b = WDR + 20*(jj % 5)
            for m in range(5): fill.append((f'ds_read_b128 v[{b+4*m}:{b+4*m+3}], v4 offset:{(jj-5)*SLOT + 1024*m}', None)) if (jj-5)*SLOT + 4096 < 65536 else None
        if j >= 1 and j + 3 <= 11: fill += act_loads(j + 3)
        big = []
        if 5 <= j + 4 <= 11 and j >= 1 and (j + 4 - 5)*SLOT + 4096 >= 65536:
            jj = j + 4
            b = WDR + 20*(jj % 5)
            big.append((f'v_add_u32 v3, {(jj-5)*SLOT}, v4', None))
            for m in range(5): big.append((f'ds_read_b128 v[{b+4*m}:{b+4*m+3}], v3 offset:{1024*m}', None))
        fill = big + fill
        bw = WDR + 20*(j % 5); ba = ACTR + 16*(j % 4)
        k = 0; n = len(fill); idx = 0
        for m in range(5):
            for tl in range(4):
                acc = 20*tl + 4*m
                c = '0' if j == 0 else f'a[{acc}:{acc+3}]'
                a(f'v_mfma_f32_16x16x32_bf16 a[{acc}:{acc+3}], v[{bw+4*m}:{bw+4*m+3}], v[{ba+4*tl}:{ba+4*tl+3}], {c}')
                idx += 1
                upto = min(n, idx) if idx < 20 else n
                while k < upto:
                    emit([fill[k]]); k += 1
    if asmgen.STAMPS: stamp(a, 3)
    GB = 112
    a('v_lshrrev_b32 v3, 4, v9') if False else None
    a('v_and_b32 v9, 63, v0')
    a('v_lshrrev_b32 v3, 4, v9')
    a('v_lshlrev_b32 v3, 4, v3')
    a('s_and_b32 s63, s41, 7')
    a('s_mul_i32 s52, s63, 320')
    a(f's_add_u32 s52, s52, {3200*4}')
    for m in range(5):
        a(f'buffer_load_dwordx4 v[{GB+4*m}:{GB+4*m+3}], v3, s[64:67], s52 offen offset:{64*m}')
    a('s_add_u32 s52, s52, 15360')
    for m in range(5):
        a(f'buffer_load_dwordx4 v[{GB+20+4*m}:{GB+20+4*m+3}], v3, s[64:67], s52 offen offset:{64*m}')
    hbar(a)
    for tl in range(1, 4):
        a(f's_add_u32 s50, s58, {tl}')
        a('s_and_b32 s50, s50, 3')
        a('s_mul_i32 s50, s50, 15360')
        a(f's_add_u32 s50, s50, {RED + (tl-1)*5120}')
        a(f'v_add_u32 v{4+tl}, s50, v8')
    for tl in range(1, 4):
        for m in range(5):
            a(f'ds_write_b128 v{4+tl}, a[{20*tl+4*m}:{20*tl+4*m+3}] offset:{1024*m}')
    a('s_mul_i32 s50, s58, 15360')
    a(f's_add_u32 s50, s50, {RED}')
    a('v_add_u32 v4, s50, v8')
    a('v_lshrrev_b32 v5, 4, v9')
    a('v_bfe_u32 v6, v9, 2, 2')
    a('v_lshl_add_u32 v5, v5, 2, v6')
    a('v_lshlrev_b32 v5, 7, v5')
    a('v_and_b32 v6, 3, v9')
    a('v_lshl_add_u32 v5, v6, 3, v5')
    a('s_lshl_b32 s50, s58, 5')
    a(f's_add_u32 s50, s50, {X1L}')
    a('v_add_u32 v5, s50, v5')
    a('s_lshl_b32 s50, s61, 6')
    a('s_lshl_b32 s51, s58, 4')
    a('s_add_u32 s50, s50, s51')
    a('v_and_b32 v6, 15, v9')
    a('v_add_u32 v6, s50, v6')
    a('v_mul_u32_u24 v6, 1280, v6')
    a('v_lshrrev_b32 v7, 4, v9')
    a('v_lshl_add_u32 v6, v7, 3, v6')
    a('s_mul_i32 s50, s63, 160')
    a('v_add_u32 v6, s50, v6')
    for m in range(5):
        for r in range(4): a(f'v_accvgpr_read_b32 v{16+4*m+r}, a{4*m+r}')
    a('s_waitcnt lgkmcnt(0)')
    hbar(a)
    if asmgen.STAMPS: stamp(a, 4)
    X = 100
    for m in range(5):
        a(f'ds_read_b64_tr_b16 v[{X+2*m}:{X+2*m+1}], v5 offset:{2048*m}')
    Rr = 36
    for sl in range(3):
        for m in range(5):
            a(f'ds_read_b128 v[{Rr+20*sl+4*m}:{Rr+20*sl+4*m+3}], v4 offset:{(sl*5+m)*1024}')
    a('s_waitcnt lgkmcnt(10)')
    for sl in range(3):
        if sl == 1: a('s_waitcnt lgkmcnt(5)')
        if sl == 2: a('s_waitcnt lgkmcnt(0)')
        for i in range(20): a(f'v_add_f32 v{16+i}, v{16+i}, v{Rr+20*sl+i}')
    a('s_waitcnt vmcnt(0)')
    for i in range(20): a(f'v_add_f32 v{GB+i}, v{GB+i}, v{GB+20+i}')
    for i in range(0, 20, 2):
        a(f'v_cvt_pk_bf16_f32 v{GB+20}, v{GB+i}, v{GB+i+1}')
        a(f'v_lshlrev_b32 v{GB+i}, 16, v{GB+20}')
        a(f'v_and_b32 v{GB+i+1}, 0xffff0000, v{GB+20}')
    for m in range(5):
        a(f'v_lshlrev_b32 v156, 16, v{X+2*m}')
        a(f'v_and_b32 v157, 0xffff0000, v{X+2*m}')
        a(f'v_lshlrev_b32 v158, 16, v{X+2*m+1}')
        a(f'v_and_b32 v159, 0xffff0000, v{X+2*m+1}')
        for r in range(4): a(f'v_fma_f32 v{156+r}, v{GB+4*m+r}, v{16+4*m+r}, v{156+r}')
        a(f'v_cvt_pk_bf16_f32 v{160+2*m}, v156, v157')
        a(f'v_cvt_pk_bf16_f32 v{161+2*m}, v158, v159')
        a(f'buffer_store_dwordx2 v[{160+2*m}:{161+2*m}], v6, s[76:79], 0 offen offset:{32*m} {outf}')
    if asmgen.STAMPS:
        stamp(a, 5)
        a('s_waitcnt vmcnt(0)')
        stamp(a, 6)
        a('v_subrev_u32 v0, 256, v0')
        stamp_flush(a, 3, 7)
    trace(a, 1, 7)
    trace_flush_h(a)
    hstamp_end(a, 2, 8)
    a('s_endpgm')

def k34(a, stf='', outf=''):
    kernel_begin(a, 'k34_kernel')
    hstamp_start(a, 2)
    a('s_cmp_ge_u32 s2, 256')
    a('s_cbranch_scc1 k34_exit')
    stamp(a, 0)
    wave_id(a, 3, 1)
    a('s_load_dwordx2 s[12:13], s[0:1], 104')
    a('s_load_dwordx2 s[14:15], s[0:1], 120')
    a('s_and_b32 s42, s2, 7')
    a('s_lshr_b32 s43, s2, 3')
    a('s_and_b32 s40, s42, 1')
    a('s_lshl_b32 s40, s40, 3')
    a('s_and_b32 s44, s43, 7')
    a('s_add_u32 s40, s40, s44')
    a('s_lshr_b32 s41, s42, 1')
    a('s_lshl_b32 s41, s41, 2')
    a('s_lshr_b32 s44, s43, 3')
    a('s_add_u32 s41, s41, s44')
    a('s_cmp_lt_u32 s3, 4')
    a('s_cbranch_scc0 k34_helper')
    a('s_waitcnt lgkmcnt(0)')
    srd(a, 16, 14, Y.SZ['X1T'], Y.X1T); srd(a, 28, 14, Y.SZ['ACT'], Y.ACT); srd(a, 32, 14, Y.SZ['FLG'], Y.FLG); srd(a, 68, 14, Y.SZ['STAT2'], Y.STAT2)
    mfma_path(a, stf)
    a('k34_helper:')
    a('s_waitcnt lgkmcnt(0)')
    srd(a, 16, 14, Y.SZ['X1T'], Y.X1T); srd(a, 20, 14, Y.SZ['WP'], Y.WP)
    srd(a, 24, 14, Y.SZ['STP'], Y.STP); srd(a, 28, 14, Y.SZ['ACT'], Y.ACT); srd(a, 32, 14, Y.SZ['FLG'], Y.FLG)
    srd(a, 36, 14, Y.SZ['WDP'], Y.WDP); srd(a, 64, 14, Y.SZ['MOD'], Y.MOD); srd(a, 68, 14, Y.SZ['STAT2'], Y.STAT2)
    srd(a, 76, 12, 2048*1280)
    helper_path(a, outf)
    a('k34_exit:')
    a('s_endpgm')
```

```python
from asmgen import *
import layout as Y
K4_GRID = 256
RED = 10240
K4_LDS = RED + 61440
K4_VGPR = 256 + 80
K4_ACC = 256
PD = 4
NSL = PD + 1
STG = 16

def k4(a, stf='', outf=''):
    kernel_begin(a, 'k4_kernel')
    hstamp_start(a, 3)
    a('s_cmp_ge_u32 s2, 256')
    a('s_cbranch_scc1 k4_exit')
    stamp(a, 0)
    wave_id(a, 3, 1)
    a('s_load_dwordx2 s[12:13], s[0:1], 104')
    a('s_load_dwordx2 s[14:15], s[0:1], 120')
    a('s_and_b32 s42, s2, 7')
    a('s_lshr_b32 s43, s2, 3')
    a('s_lshr_b32 s40, s42, 1')
    a('s_lshl_b32 s40, s40, 3')
    a('s_and_b32 s44, s43, 7')
    a('s_add_u32 s40, s40, s44')
    a('s_and_b32 s41, s42, 1')
    a('s_lshl_b32 s41, s41, 2')
    a('s_lshr_b32 s44, s43, 3')
    a('s_add_u32 s41, s41, s44')
    a('v_and_b32 v9, 63, v0')
    a('v_lshlrev_b32 v1, 4, v9')
    a('s_mul_i32 s48, s40, 48')
    a('s_mul_i32 s49, s3, 12')
    a('s_add_u32 s48, s48, s49')
    a('s_lshl_b32 s48, s48, 12')
    for tl in range(4):
        a(f's_add_u32 s50, s3, {tl}')
        a('s_and_b32 s50, s50, 3')
        a('s_lshl_b32 s50, s50, 10')
        a(f's_add_u32 s{44+tl}, s48, s50')
    a('s_mul_i32 s48, s41, 48')
    a('s_mul_i32 s49, s3, 12')
    a('s_add_u32 s48, s48, s49')
    a('s_mul_i32 s48, s48, 5120')
    a('s_add_u32 s49, s48, 4096')
    a('v_lshrrev_b32 v2, 3, v9')
    a('v_lshlrev_b32 v2, 12, v2')
    a('v_and_b32 v3, 7, v9')
    a('v_lshl_add_u32 v2, v3, 4, v2')
    a('s_mul_i32 s50, s41, 80')
    a('s_lshl_b32 s51, s3, 3')
    a('s_add_u32 s50, s50, s51')
    a('s_lshl_b32 s50, s50, 12')
    a('s_lshl_b32 s51, s40, 7')
    a('s_add_u32 s50, s50, s51')
    a('s_lshl_b32 s51, s3, 10')
    a('v_lshrrev_b32 v3, 4, v9')
    a('v_lshlrev_b32 v3, 4, v3')
    a('s_mul_i32 s52, s41, 320')
    a(f's_add_u32 s52, s52, {3200*4}')
    a('s_waitcnt lgkmcnt(0)')
    srd(a, 16, 14, Y.SZ['ACT'], Y.ACT); srd(a, 20, 14, Y.SZ['WDP'], Y.WDP); srd(a, 24, 14, Y.SZ['X1T'], Y.X1T)
    srd(a, 28, 14, Y.SZ['MOD'], Y.MOD); srd(a, 32, 12, 2048*1280)
    def loads(s):
        b = STG + 36*(s % NSL)
        o = []
        for tl in range(4):
            o.append(f'buffer_load_dwordx4 v[{b+4*tl}:{b+4*tl+3}], v1, s[16:19], s{44+tl} offen')
        for m in range(4):
            o.append(f'buffer_load_dwordx4 v[{b+16+4*m}:{b+19+4*m}], v1, s[20:23], s48 offen offset:{1024*m}')
        o.append(f'buffer_load_dwordx4 v[{b+32}:{b+35}], v1, s[20:23], s49 offen')
        for tl in range(4): o.append(f's_add_u32 s{44+tl}, s{44+tl}, 4096')
        o.append('s_add_u32 s48, s48, 5120')
        o.append('s_add_u32 s49, s49, 5120')
        return o
    for s in range(PD):
        for i in loads(s): a(i)
    for k in range(3):
        skip = a.label('k4_skip')
        if k == 2:
            a('s_cmp_ge_u32 s3, 2')
            a(f's_cbranch_scc1 {skip}')
        a('s_mov_b32 m0, s51')
        a('s_add_u32 s51, s51, 4096')
        a('buffer_load_dwordx4 v2, s[24:27], s50 offen lds')
        a(f's_add_u32 s50, s50, {32*4096}')
        if k == 2: a(f'{skip}:')
    GB = 200
    for m in range(5):
        a(f'buffer_load_dwordx4 v[{GB+4*m}:{GB+4*m+3}], v3, s[28:31], s52 offen offset:{64*m}')
    EXTRA = 7
    stamp(a, 1)
    for s in range(12):
        if s < PD: cnt = 9*(PD-1-s) + EXTRA + 9*s
        else: cnt = 9*min(PD - 1, 11 - s)
        a(f's_waitcnt vmcnt({min(cnt, 63)})')
        if s == 0: stamp(a, 2)
        b = STG + 36*(s % NSL)
        nxt = loads(s + PD) if s + PD < 12 else []
        k = 0; n = len(nxt); idx = 0
        for m in range(5):
            for tl in range(4):
                acc = 20*tl + 4*m
                c = '0' if s == 0 else f'a[{acc}:{acc+3}]'
                a(f'v_mfma_f32_16x16x32_bf16 a[{acc}:{acc+3}], v[{b+16+4*m}:{b+19+4*m}], v[{b+4*tl}:{b+4*tl+3}], {c}')
                idx += 1
                upto = (n * idx) // 20
                while k < upto:
                    a(nxt[k]); k += 1
    stamp(a, 3)
    for tl in range(1, 4):
        a(f's_add_u32 s50, s3, {tl}')
        a('s_and_b32 s50, s50, 3')
        a('s_mul_i32 s50, s50, 15360')
        a(f's_add_u32 s50, s50, {RED + (tl-1)*5120}')
        a(f'v_add_u32 v{4+tl}, s50, v1')
    a('s_nop 7')
    for tl in range(1, 4):
        for m in range(5):
            a(f'ds_write_b128 v{4+tl}, a[{20*tl+4*m}:{20*tl+4*m+3}] offset:{1024*m}')
    a('s_mul_i32 s50, s3, 15360')
    a(f's_add_u32 s50, s50, {RED}')
    a('v_add_u32 v4, s50, v1')
    a('v_lshrrev_b32 v5, 4, v9')
    a('v_bfe_u32 v6, v9, 2, 2')
    a('v_lshl_add_u32 v5, v5, 2, v6')
    a('v_lshlrev_b32 v5, 7, v5')
    a('v_and_b32 v6, 3, v9')
    a('v_lshl_add_u32 v5, v6, 3, v5')
    a('s_lshl_b32 s50, s3, 5')
    a('v_add_u32 v5, s50, v5')
    a('s_lshl_b32 s50, s40, 6')
    a('s_lshl_b32 s51, s3, 4')
    a('s_add_u32 s50, s50, s51')
    a('v_and_b32 v6, 15, v9')
    a('v_add_u32 v6, s50, v6')
    a('v_mul_u32_u24 v6, 1280, v6')
    a('v_lshrrev_b32 v7, 4, v9')
    a('v_lshl_add_u32 v6, v7, 3, v6')
    a('s_mul_i32 s50, s41, 160')
    a('v_add_u32 v6, s50, v6')
    for m in range(5):
        for r in range(4): a(f'v_accvgpr_read_b32 v{16+4*m+r}, a{4*m+r}')
    a('s_waitcnt vmcnt(0) lgkmcnt(0)')
    a('s_barrier')
    stamp(a, 4)
    X = 100
    for m in range(5):
        a(f'ds_read_b64_tr_b16 v[{X+2*m}:{X+2*m+1}], v5 offset:{2048*m}')
    Rr = 36
    for sl in range(3):
        for m in range(5):
            a(f'ds_read_b128 v[{Rr+20*sl+4*m}:{Rr+20*sl+4*m+3}], v4 offset:{(sl*5+m)*1024}')
    a('s_waitcnt lgkmcnt(10)')
    for sl in range(3):
        if sl == 1: a('s_waitcnt lgkmcnt(5)')
        if sl == 2: a('s_waitcnt lgkmcnt(0)')
        for i in range(20): a(f'v_add_f32 v{16+i}, v{16+i}, v{Rr+20*sl+i}')
    for m in range(5):
        a(f'v_lshlrev_b32 v110, 16, v{X+2*m}')
        a(f'v_and_b32 v111, 0xffff0000, v{X+2*m}')
        a(f'v_lshlrev_b32 v112, 16, v{X+2*m+1}')
        a(f'v_and_b32 v113, 0xffff0000, v{X+2*m+1}')
        for r in range(4): a(f'v_fma_f32 v{110+r}, v{GB+4*m+r}, v{16+4*m+r}, v{110+r}')
        a(f'v_cvt_pk_bf16_f32 v{114+2*m}, v110, v111')
        a(f'v_cvt_pk_bf16_f32 v{115+2*m}, v112, v113')
        a(f'buffer_store_dwordx2 v[{114+2*m}:{115+2*m}], v6, s[32:35], 0 offen offset:{32*m} {outf}')
    stamp(a, 5)
    a('s_waitcnt vmcnt(0)')
    stamp(a, 6)
    stamp_flush(a, 3, 7)
    hstamp_end(a, 3, 8)
    a('k4_exit:')
    a('s_endpgm')
```

```python
from asmgen import *
LOG2E = 1.4426950408889634
def cexp(a, dst, p, zr, zi, t0, t1):
    if p == 1:
        a(f'v_exp_f32 v{t0}, v{zr}')
        a(f'v_fract_f32 v{t1}, v{zi}')
    else:
        a(f'v_mul_f32 v{t0}, {f32(float(p))}, v{zr}')
        a(f'v_mul_f32 v{t1}, {f32(float(p))}, v{zi}')
        a(f'v_exp_f32 v{t0}, v{t0}')
        a(f'v_fract_f32 v{t1}, v{t1}')
    a(f'v_cos_f32 v{dst}, v{t1}')
    a(f'v_sin_f32 v{dst+1}, v{t1}')
    a('s_nop 0')
    a(f'v_mul_f32 v{dst}, v{dst}, v{t0}')
    a(f'v_mul_f32 v{dst+1}, v{dst+1}, v{t0}')
def cmul(a, d, x, y):
    assert d != x and d != y and d % 2 == 0 and x % 2 == 0 and y % 2 == 0
    a(f'v_pk_mul_f32 v[{d}:{d+1}], v[{x}:{x+1}], v[{y}:{y+1}] op_sel:[0,0] op_sel_hi:[1,0]')
    a(f'v_pk_fma_f32 v[{d}:{d+1}], v[{x}:{x+1}], v[{y}:{y+1}], v[{d}:{d+1}] op_sel:[1,1,0] op_sel_hi:[0,1,1] neg_lo:[1,0,0]')
def hmul_a(a, d, x, w):
    assert d != x and d != w
    a(f'v_pk_mul_f16 v{d}, v{x}, v{w} op_sel:[0,0] op_sel_hi:[1,0]')
    a(f'v_pk_fma_f16 v{d}, v{x}, v{w}, v{d} op_sel:[1,1,0] op_sel_hi:[0,1,1] neg_hi:[1,0,0]')
def hmul_b(a, d, x, w):
    assert d != x and d != w
    a(f'v_pk_mul_f16 v{d}, v{x}, v{w} op_sel:[0,0] op_sel_hi:[1,0]')
    a(f'v_pk_fma_f16 v{d}, v{x}, v{w}, v{d} op_sel:[1,1,0] op_sel_hi:[0,1,1] neg_lo:[1,0,0]')

def kgen(a):
    RS = 288; AOFF = 16 * RS
    ZR, ZI, T0, T1, W = 4, 5, 6, 7, 8
    a('v_lshlrev_b32 v3, 16, v3')
    a('v_lshlrev_b32 v4, 16, v4')
    a('v_lshlrev_b32 v5, 16, v5')
    a('v_lshlrev_b32 v10, 16, v10')
    a('v_lshlrev_b32 v11, 16, v11')
    a(f'v_mul_f32 v3, {f32(LOG2E)}, v3')
    a(f'v_mul_f32 v4, {f32(LOG2E)}, v4')
    a('v_exp_f32 v3, v3')
    a('v_exp_f32 v4, v4')
    a('s_nop 0')
    bf16r(a, 3, T0); bf16r(a, 4, T0)
    a('v_mul_f32 v4, v4, v3')
    a('v_mul_f32 v5, v5, v3')
    a(f'v_mul_f32 v4, {f32(-LOG2E)}, v4')
    a(f'v_mul_f32 v5, {f32(1/(2*3.141592653589793))}, v5')
    BF, AF, ACC = 48, 64, 80
    def wr(row_off, reg): a(f'ds_write_addtid_b32 v{reg} offset:{row_off}')
    P8, P16, P24, P32, P64 = 12, 14, 16, 18, 20
    cexp(a, P8, 8, ZR, ZI, T0, T1)
    cmul(a, P16, P8, P8); cmul(a, P24, P16, P8); cmul(a, P32, P16, P16); cmul(a, P64, P32, P32); cmul(a, 22, P64, P32)
    H = 24
    for i, r in enumerate((P8, P16, P24, P32, P64, 22)): a(f'v_cvt_pk_f16_f32 v{H+1+i}, v{r}, v{r+1}')
    a(f'v_mov_b32 v{H}, 0x3c00')
    wr(0, H)
    for b in range(1, 4): wr(b*RS, H+b)
    for aa in range(1, 4):
        wr(4*aa*RS, H+3+aa)
        for b in range(1, 4):
            d = 32 + ((aa*3 + b) & 3)
            hmul_b(a, d, H+3+aa, H+b)
            wr((4*aa+b)*RS, d)
    for ks in range(4):
        a(f'ds_read_b128 v[{BF+4*ks}:{BF+4*ks+3}], v2 offset:{64*ks}')
    A32 = (10, 12)
    cexp(a, W, 1, ZR, ZI, T0, T1)
    AH = 14
    cur = 10
    for i in range(8):
        a(f'v_cvt_pk_f16_f32 v{AH+i}, v{cur}, -v{cur+1}')
        wr(AOFF + i*RS, AH+i)
        if i < 7:
            nxt = 12 if cur == 10 else 10
            cmul(a, nxt, cur, W); cur = nxt
    def wpow(p, dst):
        cexp(a, W, p, ZR, ZI, T0, T1)
        a(f'v_cvt_pk_f16_f32 v{dst}, v{W}, v{W+1}')
    WH = 30
    wpow(128, WH)
    for i in range(8):
        hmul_a(a, AH+8+i, AH+i, WH); wr(AOFF + (8+i)*RS, AH+8+i)
    def rd_a():
        for ks in range(4):
            a(f'ds_read_b128 v[{AF+4*ks}:{AF+4*ks+3}], v2 offset:{AOFF + 64*ks}')
    def mm(t):
        for ks in range(4):
            c = '0' if ks == 0 else f'v[{ACC+4*t}:{ACC+4*t+3}]'
            a(f'v_mfma_f32_16x16x32_f16 v[{ACC+4*t}:{ACC+4*t+3}], v[{AF+4*ks}:{AF+4*ks+3}], v[{BF+4*ks}:{BF+4*ks+3}], {c}')
    rd_a()
    wpow(256, WH)
    a('s_waitcnt lgkmcnt(0)')
    mm(0)
    a0 = lambda i: AH + i
    a128 = lambda i: AH + 8 + i
    K256, K260, K384, K388, K512, K640, K768, K896, K1024 = 32, 33, 34, 35, 36, 37, 38, 39, 40
    tmp = [41, 42]
    def prod(row, src, keep=None):
        dst = keep if keep is not None else tmp[row & 1]
        hmul_a(a, dst, src, WH); wr(AOFF + row*RS, dst)
    prod(0, a0(0), K256); prod(1, a0(2)); prod(2, a0(4), K260); prod(3, a0(6))
    prod(4, a128(0), K384); prod(5, a128(2)); prod(6, a128(4), K388); prod(7, a128(6))
    wpow(512, WH)
    prod(8, a0(0), K512); prod(9, a0(4)); prod(10, a128(0), K640); prod(11, a128(4))
    prod(12, K256, K768); prod(13, K260); prod(14, K384, K896); prod(15, K388)
    rd_a()
    wpow(1024, WH)
    a('s_waitcnt lgkmcnt(0)')
    mm(1)
    prod(0, a0(0), K1024); prod(1, a128(0)); prod(2, K256); prod(3, K384)
    prod(4, K512); prod(5, K640); prod(6, K768); prod(7, K896)
    prod(8, K1024)
    rd_a()
    a('v_and_b32 v6, 15, v0')
    a('v_bfe_u32 v7, v0, 4, 2')
    a('v_and_b32 v10, 1, v7')
    a('v_lshlrev_b32 v10, 2, v10')
    a('v_lshrrev_b32 v11, 1, v7')
    a('v_lshl_add_u32 v10, v11, 7, v10')
    a('v_lshl_add_u32 v10, v6, 3, v10')
    a('v_lshlrev_b32 v10, 2, v10')
    a('v_add_u32 v10, s42, v10')
    a('v_cmp_gt_u32 vcc, 2, v7')
    a('v_lshlrev_b32 v12, 2, v6')
    a('v_lshlrev_b32 v13, 1, v6')
    a('v_mov_b32 v14, 32')
    a('v_cndmask_b32 v12, v13, v12, vcc')
    a('v_mov_b32 v15, 2')
    a('v_cndmask_b32 v14, v14, v15, vcc')
    a('v_lshl_add_u32 v12, v7, 6, v12')
    a('v_add_u32 v12, 256, v12')
    a('v_add_u32 v13, v12, v14')
    a('v_lshlrev_b32 v12, 2, v12')
    a('v_lshlrev_b32 v13, 2, v13')
    a('v_add_u32 v12, s42, v12')
    a('v_add_u32 v13, s42, v13')
    a('v_lshl_add_u32 v14, v7, 6, v6')
    a('v_add_u32 v14, 512, v14')
    a('v_lshlrev_b32 v14, 2, v14')
    a('v_add_u32 v14, s42, v14')
    a('s_waitcnt lgkmcnt(0)')
    mm(2)
    a(f'ds_write_b128 v10, v[{ACC}:{ACC+3}]')
    a(f'ds_write_b64 v12, v[{ACC+4}:{ACC+5}]')
    a(f'ds_write_b64 v13, v[{ACC+6}:{ACC+7}]')
    a('s_nop 7')
    for r in range(4):
        a(f'ds_write_b32 v14, v{ACC+8+r} offset:{64*r}')
```

```python
import numpy as np
L, D, N, F = 2048, 640, 192, 1536
MOD  = 0x170000
ST1  = 0x004000
STP  = 0x010000
KX   = 0x1800000 - 0x300000
STAT2 = 0x120000
FLG  = 0x160000
XT   = 0x200000
X1T  = 0x500000
WP   = 0x800000
WDP  = 0xC00000
ACT  = 0xE00000
WS_USED = 0x1800000
SZ = dict(STAT2=16*16*1024, FLG=20480, MOD=2*3840*4, ST1=2048*8, STP=10*16*192*8, KX=640*4096, XT=640*4096, X1T=640*4096, WP=16*40*6*1024, WDP=8*48*5*1024, ACT=32*48*4*1024)

def fU(U, i): return 128 * (U >> 3) + 8 * i + (U & 7)
def fslot(T, g, j): return fU(2*T + (g >> 1), 8 * (j >> 2) + 4 * (g & 1) + (j & 3))
def rho(g, j): return 16 * (g & 1) + 8 * (j >> 2) + 4 * (g >> 1) + (j & 3)
def pos_idx(l):
    if l < 256: return l
    s = l.bit_length() - 8
    q = l >> s; rem = l & ((1 << s) - 1); half = 1 << (s - 1)
    if rem > half or (rem == half and (q & 1)): q += 1
    return 128 * s + q
def idx_pos(i):
    if i <= 256: return i
    s = (i - 128) // 128
    if i == 640: return 2048
    s = (i // 128) - 1
    return (i - 128 * s) << s
if __name__ == '__main__':
    import struct
    def bf16r(x):
        u = struct.unpack('<I', struct.pack('<f', x))[0]
        u = (u + 0x7fff + ((u >> 16) & 1)) & 0xffff0000
        return struct.unpack('<f', struct.pack('<I', u))[0]
    for l in range(2048):
        assert idx_pos(pos_idx(l)) == int(bf16r(float(l))), (l, pos_idx(l), idx_pos(pos_idx(l)), bf16r(float(l)))
    print('pos map ok', max(pos_idx(l) for l in range(2048)))
```

```python
import sys
from asmgen import *
import layout as Y
import k1
def build(kernels, stf=''):
    a = Asm()
    launches = []
    if 'k1' in kernels: launches.append(f'; @launch kernel=k1_kernel grid=({k1.K1_GRID},1,1) block=(256,1,1) lds={k1.K1_LDS}')
    try:
        import k2
        if 'k2' in kernels: launches.append(f'; @launch kernel=k2_kernel grid=({k2.K2_GRID},1,1) block=(256,1,1) lds={k2.K2_LDS}')
    except ImportError: pass
    try:
        import k3
        if 'k3' in kernels: launches.append(f'; @launch kernel=k3_kernel grid=({k3.K3_GRID},1,1) block=({k3.K3_BLOCK},1,1) lds={k3.K3_LDS}')
    except ImportError: pass
    import k34
    if 'k34' in kernels: launches.append(f'; @launch kernel=k34_kernel grid=({k34.K34_GRID},1,1) block=({k34.K34_BLOCK},1,1) lds={k34.K34_LDS}')
    try:
        import k4
        if 'k4' in kernels: launches.append(f'; @launch kernel=k4_kernel grid=({k4.K4_GRID},1,1) block=(256,1,1) lds={k4.K4_LDS}')
    except ImportError: pass
    hdr = [l for l in open('adaLN_cond__ssm_conv_s4d__geglu_ffn__prompt.s.ref').read().split('\n') if l.startswith(';') and '@launch' not in l and 'Override launch' not in l and 'grid=ceil' not in l]
    hdr = hdr[:18]
    a('\n'.join(hdr))
    if 'mark' in kernels:
        l2 = []
        for i, l in enumerate(launches):
            l2.append(l); l2.append(f'; @launch kernel=mark{i}_kernel grid=(256,1,1) block=(64,1,1) lds=0')
        launches = l2
    a('\n'.join(launches))
    a('.amdgcn_target "amdgcn-amd-amdhsa--gfx950"')
    a('.text')
    if 'k1' in kernels: k1.k1(a, stf)
    if 'k2' in kernels: k2.k2(a, stf)
    if 'k3' in kernels: k3.k3(a, stf)
    if 'k4' in kernels: k4.k4(a, stf)
    if 'k34' in kernels: k34.k34(a, stf)
    a('code_end:')
    a('s_endpgm')
    if 'mark' in kernels:
        for i in range(4):
            kernel_begin(a, f'mark{i}_kernel')
            stamp(a, 0)
            stamp_flush(a, 4 + i, 1)
            a('s_endpgm')
        for i in range(4): descriptor(a, f'mark{i}_kernel', 16)
    if 'k1' in kernels: descriptor(a, 'k1_kernel', 96)
    if 'k2' in kernels: descriptor(a, 'k2_kernel', k2.K2_VGPR)
    if 'k3' in kernels: descriptor(a, 'k3_kernel', k3.K3_VGPR, accum=k3.K3_ACC)
    if 'k4' in kernels: descriptor(a, 'k4_kernel', k4.K4_VGPR, accum=k4.K4_ACC)
    if 'k34' in kernels: descriptor(a, 'k34_kernel', k34.K34_VGPR, accum=k34.K34_ACC)
    return a.text()
if __name__ == '__main__':
    out = sys.argv[1]
    ks = sys.argv[2].split(',')
    stf = sys.argv[3] if len(sys.argv) > 3 else 'sc1'
    import asmgen
    asmgen.STAMPS = len(sys.argv) > 4 and sys.argv[4] == 'stamps'
    asmgen.HSTAMP = len(sys.argv) > 4 and sys.argv[4] == 'hstamp'
    asmgen.TRACE = len(sys.argv) > 4 and sys.argv[4] == 'trace'
    asmgen.NLAUNCH = len([k for k in ks if k.startswith('k')])
    open(out, 'w').write(build(ks, stf))
```

```python
from asmgen import *
import layout as Y
LOG2E = 1.4426950408889634
K1_LDS = 27648
K1_GRID = 1048
K0, G0, T0, S0 = 0, 640, 760, 920

def cexp(a, dst, p, zr, zi, t0, t1):
    if p == 1:
        a(f'v_exp_f32 v{t0}, v{zr}')
        a(f'v_fract_f32 v{t1}, v{zi}')
    else:
        a(f'v_mul_f32 v{t0}, {f32(float(p))}, v{zr}')
        a(f'v_mul_f32 v{t1}, {f32(float(p))}, v{zi}')
        a(f'v_exp_f32 v{t0}, v{t0}')
        a(f'v_fract_f32 v{t1}, v{t1}')
    a(f'v_cos_f32 v{dst}, v{t1}')
    a(f'v_sin_f32 v{dst+1}, v{t1}')
    a('s_nop 0')
    a(f'v_mul_f32 v{dst}, v{dst}, v{t0}')
    a(f'v_mul_f32 v{dst+1}, v{dst+1}, v{t0}')

def cmul(a, d, x, y):
    assert d != x and d != y and d % 2 == 0 and x % 2 == 0 and y % 2 == 0
    a(f'v_pk_mul_f32 v[{d}:{d+1}], v[{x}:{x+1}], v[{y}:{y+1}] op_sel:[0,0] op_sel_hi:[1,0]')
    a(f'v_pk_fma_f32 v[{d}:{d+1}], v[{x}:{x+1}], v[{y}:{y+1}], v[{d}:{d+1}] op_sel:[1,1,0] op_sel_hi:[0,1,1] neg_lo:[1,0,0]')

def role_k(a, stf):
    RS = 288
    AOFF = 16 * RS
    WREG = 32 * RS
    a('k1_roleK:')
    stamp(a, 0)
    wave_id(a, 3, 1)
    a('s_load_dwordx4 s[4:7], s[0:1], 8')
    a('s_load_dwordx4 s[8:11], s[0:1], 24')
    a('s_load_dwordx2 s[12:13], s[0:1], 40')
    a('s_load_dwordx2 s[14:15], s[0:1], 120')
    a(f's_sub_u32 s61, s2, {K0}')
    a('s_cmp_eq_u32 s3, 3')
    a('s_cbranch_scc1 k1_kfin0')
    a('s_mul_i32 s40, s61, 192')
    a('v_add_u32 v1, s40, v0')
    a('v_lshlrev_b32 v1, 1, v1')
    a('s_lshl_b32 s41, s61, 1')
    a('v_mov_b32 v2, s41')
    a('s_waitcnt lgkmcnt(0)')
    srd(a, 16, 4, 640*192*2); srd(a, 20, 6, 640*192*2); srd(a, 24, 8, 640*192*2); srd(a, 28, 10, 640*192*2)
    srd(a, 32, 12, 640*2)
    a('buffer_load_ushort v3, v2, s[32:35], 0 offen')
    a('buffer_load_ushort v4, v1, s[16:19], 0 offen')
    a('buffer_load_ushort v5, v1, s[20:23], 0 offen')
    a('buffer_load_ushort v10, v1, s[24:27], 0 offen')
    a('buffer_load_ushort v11, v1, s[28:31], 0 offen')
    a(f's_mul_i32 s42, s3, {WREG}')
    a('v_and_b32 v6, 63, v0')
    a('v_and_b32 v7, 15, v6')
    a('v_lshrrev_b32 v8, 4, v6')
    a(f'v_mul_u32_u24 v9, {RS}, v7')
    a('v_lshl_add_u32 v9, v8, 4, v9')
    stamp(a, 1)
    a('s_waitcnt vmcnt(0)')
    stamp(a, 2)
    a('v_add_u32 v2, s42, v9')
    a('s_mov_b32 m0, s42')
    a('s_nop 0')
    import kgen
    kgen.kgen(a)
    a('s_waitcnt lgkmcnt(0)')
    a('s_barrier')
    stamp(a, 3)
    a('s_branch k1_kfin1')
    a('k1_kfin0:')
    a('s_waitcnt lgkmcnt(0)')
    a('s_barrier')
    import os
    WP = os.environ.get('WPF', '')
    if WP:
        a('s_load_dwordx4 s[64:67], s[0:1], 64')
        a('s_load_dwordx2 s[68:69], s[0:1], 80')
        a('v_and_b32 v5, 63, v0')
        a('v_lshlrev_b32 v5, 4, v5')
        a('s_mul_i32 s70, s61, 3072')
        a('s_waitcnt lgkmcnt(0)')
        for ch, b in (('g', 64), ('u', 66), ('d', 68)):
            if ch not in WP: continue
            srd(a, 72, b, 640*3072)
            for i in range(3):
                a(f'buffer_load_dwordx4 v[8:11], v5, s[72:75], s70 offen offset:{1024*i}')
    a('k1_kfin1:')
    srd(a, 36, 14, Y.SZ['KX'], Y.KX)
    TBL = 3 * WREG - 2048 + 0
    TBL = 27648 - 1312
    a('v_lshlrev_b32 v3, 3, v0')
    a('v_cvt_f32_u32 v32, v3')
    for i in range(1, 8): a(f'v_add_f32 v{32+i}, {f32(float(i))}, v32')
    for i in range(4): a(f'v_cvt_pk_bf16_f32 v{40+i}, v{32+2*i}, v{33+2*i}')
    a(f's_mov_b32 s50, {hex((TBL - 0x8500) & 0xffffffff)}')
    for i in range(4):
        a(f'v_and_b32 v{32+2*i}, 0xffff, v{40+i}')
        a(f'v_lshrrev_b32 v{33+2*i}, 16, v{40+i}')
    for i in range(8): a(f'v_lshl_add_u32 v{32+i}, v{32+i}, 1, s50')
    a('v_lshlrev_b32 v4, 4, v0')
    a('v_cmp_gt_u32 vcc, 16, v0')
    a('s_and_saveexec_b64 s[52:53], vcc')
    for i in range(8): a(f'v_add_u32 v{32+i}, {TBL + 2*i}, v4')
    a('s_mov_b64 exec, s[52:53]')
    a('v_cmp_gt_u32 vcc, 161, v0')
    a('s_and_saveexec_b64 s[44:45], vcc')
    lab = a.label('k1_ns')
    a(f's_cbranch_execz {lab}')
    a('v_lshlrev_b32 v1, 4, v0')
    a(f'ds_read_b128 v[10:13], v1 offset:0')
    a(f'ds_read_b128 v[14:17], v1 offset:{WREG}')
    a(f'ds_read_b128 v[18:21], v1 offset:{2*WREG}')
    a('v_lshlrev_b32 v2, 3, v0')
    a('s_waitcnt lgkmcnt(0)')
    for r in range(4):
        a(f'v_add_f32 v{10+r}, v{10+r}, v{14+r}')
    for r in range(4):
        a(f'v_add_f32 v{10+r}, v{10+r}, v{18+r}')
    a('v_cvt_pk_f16_f32 v10, v10, v11')
    a('v_cvt_pk_f16_f32 v11, v12, v13')
    a(f'ds_write_b64 v2, v[10:11] offset:{TBL}')
    a(f'{lab}:')
    a('s_mov_b64 exec, s[44:45]')
    a('s_waitcnt lgkmcnt(0)')
    a('s_barrier')
    for i in range(8): a(f'ds_read_u16 v{48+i}, v{32+i}')
    a('s_lshl_b32 s40, s61, 12')
    a('s_waitcnt lgkmcnt(0)')
    for i in range(4): a(f'v_lshl_or_b32 v{40+i}, v{49+2*i}, 16, v{48+2*i}')
    a(f'buffer_store_dwordx4 v[40:43], v4, s[36:39], s40 offen {stf}')
    a('s_waitcnt vmcnt(0)') if __import__('asmgen').STAMPS else None
    stamp(a, 4)
    stamp_flush(a, 0, 5)
    a('s_endpgm')

def code_prefetch(a):
    import os
    if 'code' not in os.environ.get('WARM', 'code'): return
    lab = a.label('k1_nowarm')
    a('s_cmp_ge_u32 s2, 8')
    a(f's_cbranch_scc1 {lab}')
    a('s_getpc_b64 s[62:63]')
    a('k1_pc:')
    a('s_sub_u32 s62, s62, k1_pc-k1_kernel')
    a('s_subb_u32 s63, s63, 0')
    a('v_lshlrev_b32 v94, 7, v0')
    a('s_mov_b32 s64, code_end-k1_kernel')
    for i in range(2):
        l2 = a.label('k1_cp')
        a('v_cmp_gt_u32 vcc, s64, v94')
        a('s_and_saveexec_b64 s[66:67], vcc')
        a(f's_cbranch_execz {l2}')
        a('global_load_dword v95, v94, s[62:63]')
        a(f'{l2}:')
        a('s_mov_b64 exec, s[66:67]')
        a('v_add_u32 v94, 32768, v94')
    a(f'{lab}:')

def role_d(a, stf, base):
    a('; ---- role D: Wd fragment prep, q = s2-640')
    a('k1_roleD:')
    stamp(a, 0)
    RS = 672
    wave_id(a, 3, 1)
    a('s_load_dwordx2 s[4:5], s[0:1], 80')
    a('s_load_dwordx2 s[14:15], s[0:1], 120')
    a(f's_sub_u32 s40, s2, {base}')
    a('s_lshr_b32 s41, s40, 1')
    a('s_and_b32 s42, s40, 1')
    a('s_lshr_b32 s43, s41, 2')
    a('s_lshl_b32 s43, s43, 7')
    a('s_lshl_b32 s44, s41, 1')
    a('s_and_b32 s44, s44, 7')
    a('s_add_u32 s43, s43, s44')
    a('s_mul_i32 s43, s43, 1280')
    a('s_mul_i32 s44, s42, 640')
    a('s_add_u32 s43, s43, s44')
    a('v_and_b32 v2, 63, v0')
    a('s_waitcnt lgkmcnt(0)')
    srd(a, 16, 4, 1536*1280); srd(a, 20, 14, Y.SZ['WDP'], Y.WDP)
    for k in range(6):
        skip = a.label('k1d_skip')
        if k == 5:
            a('s_cmp_lg_u32 s3, 0')
            a(f's_cbranch_scc1 {skip}')
        a(f's_lshl_b32 s45, s3, 6')
        a(f's_add_u32 s45, s45, {256*k}')
        a('v_add_u32 v3, s45, v2')
        a('v_mul_u32_u24 v4, 1561, v3')
        a('v_lshrrev_b32 v4, 16, v4')
        a('v_mul_u32_u24 v5, 42, v4')
        a('v_sub_u32 v5, v3, v5')
        a('v_and_b32 v6, 3, v4')
        a('v_bfe_u32 v7, v4, 2, 1')
        a('v_lshl_add_u32 v6, v7, 2, v6')
        a('v_bfe_u32 v7, v4, 4, 1')
        a('v_lshl_add_u32 v6, v7, 3, v6')
        a('v_bfe_u32 v7, v4, 3, 1')
        a('v_lshl_add_u32 v6, v6, 3, v7')
        a('v_mul_u32_u24 v6, 1280, v6')
        a('v_lshl_add_u32 v6, v5, 4, v6')
        a('v_cmp_gt_u32 vcc, 40, v5')
        a('v_mov_b32 v7, 0x7ff00000')
        a('s_lshl_b32 s46, s45, 4')
        a('v_cndmask_b32 v6, v7, v6, vcc')
        a('s_mov_b32 m0, s46')
        a('s_nop 0')
        a('buffer_load_dwordx4 v6, s[16:19], s43 offen lds')
        if k == 5: a(f'{skip}:')
    a('v_lshrrev_b32 v3, 4, v2')
    a('v_bfe_u32 v4, v2, 2, 2')
    a('v_and_b32 v5, 3, v2')
    a('v_lshrrev_b32 v6, 1, v3')
    a('v_lshl_add_u32 v4, v6, 3, v4')
    a('v_and_b32 v6, 1, v3')
    a('v_lshl_add_u32 v4, v6, 2, v4')
    a(f'v_mul_u32_u24 v4, {RS}, v4')
    a('v_lshl_add_u32 v4, v5, 3, v4')
    a('s_mul_i32 s45, s3, 160')
    a('v_add_u32 v4, s45, v4')
    a('s_lshl_b32 s45, s42, 2')
    a('s_add_u32 s45, s45, s3')
    a('s_mul_i32 s45, s45, 48')
    a('s_add_u32 s45, s45, s41')
    a('s_mul_i32 s45, s45, 5120')
    a('v_lshlrev_b32 v5, 4, v2')
    a('v_add_u32 v5, s45, v5')
    a('s_movk_i32 s47, 4096')
    stamp(a, 1)
    a('s_waitcnt vmcnt(0)')
    stamp(a, 2)
    a('s_barrier')
    for m in range(5):
        a(f'ds_read_b64_tr_b16 v[{8+4*m}:{9+4*m}], v4 offset:{32*m}')
        a(f'ds_read_b64_tr_b16 v[{10+4*m}:{11+4*m}], v4 offset:{32*m + 16*RS}')
    for m in range(5):
        a(f's_waitcnt lgkmcnt({8-2*m})')
        if m < 4: a(f'buffer_store_dwordx4 v[{8+4*m}:{11+4*m}], v5, s[20:23], 0 offen offset:{1024*m} {stf}')
        else: a(f'buffer_store_dwordx4 v[{8+4*m}:{11+4*m}], v5, s[20:23], s47 offen {stf}')
    stamp(a, 3)
    a('s_waitcnt vmcnt(0)')
    stamp(a, 4)
    stamp_flush(a, 1, 5)
    a('s_endpgm')

def role_g(a, stf):
    a('; ---- role G: mod GEMV partials: WG = (64 columns, half of the rows)')
    a('k1_roleG:')
    stamp(a, 0)
    wave_id(a, 3, 1)
    a('s_load_dwordx4 s[4:7], s[0:1], 88')
    a('s_load_dwordx2 s[14:15], s[0:1], 120')
    a(f's_sub_u32 s40, s2, {G0}')
    a('s_lshr_b32 s41, s40, 1')
    a('s_and_b32 s40, s40, 1')
    a('v_and_b32 v1, 7, v0')
    a('v_lshrrev_b32 v2, 3, v0')
    a('s_mul_i32 s43, s40, 320')
    a('v_add_u32 v3, s43, v2')
    a('v_mul_u32_u24 v4, 7680, v3')
    a('v_lshl_add_u32 v4, v1, 4, v4')
    a('v_lshlrev_b32 v3, 1, v3')
    a('s_lshl_b32 s42, s41, 7')
    a('s_waitcnt lgkmcnt(0)')
    srd(a, 16, 4, 1280); srd(a, 20, 6, 640*7680); srd(a, 24, 14, Y.SZ['MOD'], Y.MOD)
    for i in range(10):
        a(f'buffer_load_ushort v{10+i}, v3, s[16:19], 0 offen offset:{64*i}')
    for i in range(10):
        a(f'buffer_load_dwordx4 v[{20+4*i}:{23+4*i}], v4, s[20:23], s42 offen')
        if i < 9: a(f's_add_u32 s42, s42, {32*7680}')
    stamp(a, 1)
    a('s_waitcnt vmcnt(10)') if False else None
    a('s_waitcnt vmcnt(10)')
    stamp(a, 2)
    for i in range(10):
        a(f'v_lshlrev_b32 v{10+i}, 16, v{10+i}')
    for i in range(10):
        a(f'v_mul_f32 v{60+i}, {f32(-LOG2E)}, v{10+i}')
    for i in range(10):
        a(f'v_exp_f32 v{60+i}, v{60+i}')
    for i in range(10):
        a(f'v_add_f32 v{60+i}, 1.0, v{60+i}')
    for i in range(10):
        a(f'v_rcp_f32 v{60+i}, v{60+i}')
    for i in range(10):
        a(f'v_mul_f32 v{10+i}, v{10+i}, v{60+i}')
    for i in range(10):
        a(f'v_cvt_pk_bf16_f32 v{60+i}, v{10+i}, v{10+i}')
    for i in range(10):
        a(f'v_lshlrev_b32 v{10+i}, 16, v{60+i}')
    ACC = 60
    for c in range(8): a(f'v_mov_b32 v{ACC+c}, 0')
    for i in range(10):
        a(f's_waitcnt vmcnt({9-i})')
        for k in range(4):
            a(f'v_lshlrev_b32 v70, 16, v{20+4*i+k}')
            a(f'v_and_b32 v71, 0xffff0000, v{20+4*i+k}')
            a(f'v_fmac_f32 v{ACC+2*k}, v{10+i}, v70')
            a(f'v_fmac_f32 v{ACC+2*k+1}, v{10+i}, v71')
    stamp(a, 3)
    a('s_nop 1')
    for c in range(8):
        a(f'v_add_f32_dpp v{ACC+c}, v{ACC+c}, v{ACC+c} row_shr:8 row_mask:0xf bank_mask:0xf bound_ctrl:0')
    a('v_lshrrev_b32 v2, 4, v0')
    a('v_lshlrev_b32 v2, 8, v2')
    a('v_lshl_add_u32 v2, v1, 5, v2')
    a('v_and_b32 v3, 15, v0')
    a('v_cmp_le_u32 vcc, 8, v3')
    a('s_and_saveexec_b64 s[44:45], vcc')
    a(f'ds_write_b128 v2, v[{ACC}:{ACC+3}]')
    a(f'ds_write_b128 v2, v[{ACC+4}:{ACC+7}] offset:16')
    a('s_mov_b64 exec, s[44:45]')
    a('s_waitcnt lgkmcnt(0)')
    a('s_barrier')
    a('v_cmp_gt_u32 vcc, 64, v0')
    a('s_and_saveexec_b64 s[44:45], vcc')
    a('s_cbranch_execz k1_exit')
    a('v_lshlrev_b32 v2, 2, v0')
    for p in range(16):
        a(f'ds_read_b32 v{10+p}, v2 offset:{256*p}')
    a('s_lshl_b32 s42, s41, 8')
    a('s_mul_i32 s43, s40, 15360')
    a('s_add_u32 s42, s42, s43')
    a('s_waitcnt lgkmcnt(0)')
    for st in (8, 4, 2, 1):
        for p in range(st):
            a(f'v_add_f32 v{10+p}, v{10+p}, v{10+p+st}')
    a(f'buffer_store_dword v10, v2, s[24:27], s42 offen {stf}')
    stamp(a, 4)
    a('s_waitcnt vmcnt(0)') if __import__('asmgen').STAMPS else None
    stamp(a, 5)
    stamp_flush(a, 0, 6)
    a('s_endpgm')

def role_s(a, stf):
    a('; ---- role S: LN1 stats')
    a('k1_roleS:')
    stamp(a, 0)
    a('s_load_dwordx2 s[4:5], s[0:1], 0')
    a('s_load_dwordx2 s[14:15], s[0:1], 120')
    a(f's_sub_u32 s40, s2, {S0}')
    a('s_lshl_b32 s40, s40, 4')
    a('v_lshrrev_b32 v1, 4, v0')
    a('v_add_u32 v1, s40, v1')
    a('v_and_b32 v2, 15, v0')
    a('v_mul_u32_u24 v3, 1280, v1')
    a('v_lshl_add_u32 v3, v2, 4, v3')
    a('s_waitcnt lgkmcnt(0)')
    srd(a, 16, 4, 2048*1280); srd(a, 20, 14, Y.SZ['ST1'], Y.ST1)
    for i in range(5):
        a(f'buffer_load_dwordx4 v[{4+4*i}:{7+4*i}], v3, s[16:19], 0 offen offset:{256*i}')
    X = 24
    stamp(a, 1)
    a('s_waitcnt vmcnt(0)') if __import__('asmgen').STAMPS else None
    stamp(a, 2)
    for i in range(5):
        a(f's_waitcnt vmcnt({4-i})')
        for k in range(4):
            a(f'v_lshlrev_b32 v{X+8*i+2*k}, 16, v{4+4*i+k}')
            a(f'v_and_b32 v{X+8*i+2*k+1}, 0xffff0000, v{4+4*i+k}')
    for c in range(4): a(f'v_add_f32 v{4+c}, v{X+c}, v{X+4+c}')
    for i in range(2, 10):
        for c in range(4): a(f'v_add_f32 v{4+c}, v{4+c}, v{X+4*i+c}')
    a('v_add_f32 v4, v4, v5')
    a('v_add_f32 v6, v6, v7')
    a('v_add_f32 v4, v4, v6')
    for sh in (8, 4, 2, 1):
        a('s_nop 1')
        a(f'v_add_f32_dpp v4, v4, v4 row_ror:{sh} row_mask:0xf bank_mask:0xf')
    a(f'v_mul_f32 v4, {f32(1/640)}, v4')
    for i in range(40): a(f'v_sub_f32 v{X+i}, v{X+i}, v4')
    for c in range(4): a(f'v_mul_f32 v{8+c}, v{X+c}, v{X+c}')
    for i in range(1, 10):
        for c in range(4): a(f'v_fmac_f32 v{8+c}, v{X+4*i+c}, v{X+4*i+c}')
    a('v_add_f32 v8, v8, v9')
    a('v_add_f32 v10, v10, v11')
    a('v_add_f32 v8, v8, v10')
    for sh in (8, 4, 2, 1):
        a('s_nop 1')
        a(f'v_add_f32_dpp v8, v8, v8 row_ror:{sh} row_mask:0xf bank_mask:0xf')
    a(f'v_mov_b32 v9, {f32(1e-5)}')
    a(f'v_fmac_f32 v9, {f32(1/640)}, v8')
    a('v_rsq_f32 v8, v9')
    a('v_lshlrev_b32 v3, 2, v1')
    a('v_mul_f32 v9, v8, v4')
    a('v_sub_f32 v9, 0, v9')
    a('v_cmp_eq_u32 vcc, 0, v2')
    a('s_and_saveexec_b64 s[44:45], vcc')
    a('s_cbranch_execz k1_exit')
    a('s_movk_i32 s46, 8192')
    a(f'buffer_store_dword v8, v3, s[20:23], 0 offen {stf}')
    a(f'buffer_store_dword v9, v3, s[20:23], s46 offen {stf}')
    stamp(a, 3)
    a('s_waitcnt vmcnt(0)')
    stamp(a, 4)
    stamp_flush(a, 0, 5)
    a('s_endpgm')

def role_t(a, stf):
    a('; ---- role T: transpose x -> XT')
    a('k1_roleT:')
    stamp(a, 0)
    wave_id(a, 3, 1)
    a('s_load_dwordx2 s[4:5], s[0:1], 0')
    a('s_load_dwordx2 s[14:15], s[0:1], 120')
    a(f's_sub_u32 s40, s2, {T0}')
    a('s_mul_i32 s41, s40, 13108')
    a('s_lshr_b32 s41, s41, 16')
    a('s_mul_i32 s42, s41, 5')
    a('s_sub_u32 s42, s40, s42')
    a('v_and_b32 v2, 63, v0')
    a('v_lshrrev_b32 v3, 4, v2')
    a('v_and_b32 v4, 15, v2')
    a('s_and_b32 s43, s3, 1')
    a('s_lshl_b32 s43, s43, 3')
    a('v_or_b32 v5, s43, v3')
    a('v_xor_b32 v5, v5, v4')
    a('v_xor_b32 v6, 4, v5')
    a('v_mul_u32_u24 v3, 1280, v3')
    a('v_lshl_add_u32 v5, v5, 4, v3')
    a('v_lshl_add_u32 v6, v6, 4, v3')
    a('s_lshl_b32 s43, s41, 6')
    a('s_lshl_b32 s44, s3, 4')
    a('s_add_u32 s43, s43, s44')
    a('s_mul_i32 s43, s43, 1280')
    a('s_lshl_b32 s45, s42, 8')
    a('s_add_u32 s43, s43, s45')
    a('s_lshl_b32 s44, s44, 8')
    a('s_waitcnt lgkmcnt(0)')
    srd(a, 16, 4, 2048*1280); srd(a, 20, 14, Y.SZ['XT'], Y.XT)
    for i in range(4):
        a('s_mov_b32 m0, s44')
        a('s_add_u32 s44, s44, 1024')
        a(f'buffer_load_dwordx4 v{5 if i < 2 else 6}, s[16:19], s43 offen lds')
        a(f's_add_u32 s43, s43, {4*1280}')
    a('v_lshrrev_b32 v3, 4, v2')
    a('v_bfe_u32 v4, v2, 2, 2')
    a('v_bfe_u32 v5, v2, 1, 1')
    a('v_and_b32 v6, 1, v2')
    a('v_lshl_add_u32 v7, v5, 3, v4')
    a('v_lshl_add_u32 v7, v3, 4, v7')
    a('v_lshl_add_u32 v8, v5, 2, v4')
    a('v_and_b32 v9, 1, v3')
    a('v_lshl_add_u32 v8, v9, 3, v8')
    a('s_lshl_b32 s45, s3, 2')
    a('v_xor_b32 v8, s45, v8')
    a('v_lshlrev_b32 v8, 4, v8')
    a('v_lshl_add_u32 v8, v7, 8, v8')
    a('v_lshl_add_u32 v8, v6, 3, v8')
    for u in range(1, 4): a(f'v_xor_b32 v{8+u}, {u<<4}, v8')
    a('v_and_b32 v4, 7, v2')
    a('v_lshlrev_b32 v4, 12, v4')
    a('v_bfe_u32 v5, v2, 3, 1')
    a('v_lshl_add_u32 v5, v3, 1, v5')
    a('v_lshl_add_u32 v4, v5, 4, v4')
    a('s_lshl_b32 s45, s42, 7')
    a('s_lshl_b32 s46, s3, 5')
    a('s_add_u32 s45, s45, s46')
    a('s_lshl_b32 s45, s45, 12')
    a('s_lshl_b32 s46, s41, 7')
    a('s_add_u32 s45, s45, s46')
    stamp(a, 1)
    a('s_waitcnt vmcnt(0)')
    stamp(a, 2)
    a('s_barrier')
    for u in range(4):
        a(f'ds_read_b64_tr_b16 v[{12+4*u}:{13+4*u}], v{8+u}')
        a(f'ds_read_b64_tr_b16 v[{14+4*u}:{15+4*u}], v{8+u} offset:1024')
    for u in range(4):
        a(f's_waitcnt lgkmcnt({6-2*u})')
        a(f'buffer_store_dwordx4 v[{12+4*u}:{15+4*u}], v4, s[20:23], s45 offen {stf}')
        if u < 3: a(f's_add_u32 s45, s45, {8*4096}')
    stamp(a, 3)
    a('s_waitcnt vmcnt(0)')
    stamp(a, 4)
    stamp_flush(a, 0, 5)
    a('s_endpgm')

def k1(a, stf=''):
    kernel_begin(a, 'k1_kernel')
    hstamp_start(a, 0)
    code_prefetch(a)
    import os
    only = os.environ.get('K1ONLY', 'KDGST')
    tgt = lambda r: f'k1_role{r}' if r in only else 'k1_exit'
    a(f's_cmp_lt_u32 s2, {G0}')
    a(f's_cbranch_scc1 {tgt("K")}')
    a(f's_cmp_lt_u32 s2, {T0}')
    a(f's_cbranch_scc1 {tgt("G")}')
    a(f's_cmp_lt_u32 s2, {S0}')
    a(f's_cbranch_scc1 {tgt("T")}')
    a(f's_cmp_lt_u32 s2, {K1_GRID}')
    a(f's_cbranch_scc1 {tgt("S")}')
    a('k1_exit:')
    a('s_endpgm')
    role_g(a, stf); role_t(a, stf); role_s(a, stf); role_k(a, stf)

if __name__ == '__main__':
    for q in range(160): assert (q * 13108) >> 16 == q // 5
    for s in range(1344): assert (s * 1561) >> 16 == s // 42
    print('ok')
```

```python
from asmgen import *
import layout as Y
LOG2E = 1.4426950408889634
K1_LDS = 27648
import os
DINK1 = os.environ.get('DINK1', '0') == '1'
K1_GRID = 1144 if DINK1 else 1048
K0, G0, T0, S0, DD0 = 0, 640, 760, 920, 1048

def cexp(a, dst, p, zr, zi, t0, t1):
    if p == 1:
        a(f'v_exp_f32 v{t0}, v{zr}')
        a(f'v_fract_f32 v{t1}, v{zi}')
    else:
        a(f'v_mul_f32 v{t0}, {f32(float(p))}, v{zr}')
        a(f'v_mul_f32 v{t1}, {f32(float(p))}, v{zi}')
        a(f'v_exp_f32 v{t0}, v{t0}')
        a(f'v_fract_f32 v{t1}, v{t1}')
    a(f'v_cos_f32 v{dst}, v{t1}')
    a(f'v_sin_f32 v{dst+1}, v{t1}')
    a('s_nop 0')
    a(f'v_mul_f32 v{dst}, v{dst}, v{t0}')
    a(f'v_mul_f32 v{dst+1}, v{dst+1}, v{t0}')

def cmul(a, d, x, y):
    assert d != x and d != y and d % 2 == 0 and x % 2 == 0 and y % 2 == 0
    a(f'v_pk_mul_f32 v[{d}:{d+1}], v[{x}:{x+1}], v[{y}:{y+1}] op_sel:[0,0] op_sel_hi:[1,0]')
    a(f'v_pk_fma_f32 v[{d}:{d+1}], v[{x}:{x+1}], v[{y}:{y+1}], v[{d}:{d+1}] op_sel:[1,1,0] op_sel_hi:[0,1,1] neg_lo:[1,0,0]')

def role_k(a, stf):
    RS = 288
    AOFF = 16 * RS
    WREG = 32 * RS
    a('k1_roleK:')
    stamp(a, 0)
    wave_id(a, 3, 1)
    a('s_load_dwordx4 s[4:7], s[0:1], 8')
    a('s_load_dwordx4 s[8:11], s[0:1], 24')
    a('s_load_dwordx2 s[12:13], s[0:1], 40')
    a('s_load_dwordx2 s[14:15], s[0:1], 120')
    a(f's_sub_u32 s61, s2, {K0}')
    a('s_cmp_eq_u32 s3, 3')
    a('s_cbranch_scc1 k1_kfin0')
    a('s_mul_i32 s40, s61, 192')
    a('v_add_u32 v1, s40, v0')
    a('v_lshlrev_b32 v1, 1, v1')
    a('s_lshl_b32 s41, s61, 1')
    a('v_mov_b32 v2, s41')
    a('s_waitcnt lgkmcnt(0)')
    a('global_load_ushort v3, v2, s[12:13]')
    a('global_load_ushort v4, v1, s[4:5]')
    a('global_load_ushort v5, v1, s[6:7]')
    a('global_load_ushort v10, v1, s[8:9]')
    a('global_load_ushort v11, v1, s[10:11]')
    a('s_getpc_b64 s[68:69]')
    a('k1_pc2:')
    a('s_add_u32 s68, s68, k1_tab_w-k1_pc2')
    a('s_addc_u32 s69, s69, 0')
    a('v_and_b32 v6, 63, v0')
    a('v_lshlrev_b32 v6, 4, v6')
    a('global_load_dwordx4 v[44:47], v6, s[68:69]')
    a(f's_mul_i32 s42, s3, {WREG}')
    a('v_and_b32 v6, 63, v0')
    a('v_and_b32 v7, 15, v6')
    a('v_lshrrev_b32 v8, 4, v6')
    a(f'v_mul_u32_u24 v9, {RS}, v7')
    a('v_lshl_add_u32 v9, v8, 4, v9')
    stamp(a, 1)
    a('s_waitcnt vmcnt(0)')
    stamp(a, 2)
    a('v_add_u32 v2, s42, v9')
    a('s_mov_b32 m0, s42')
    a('s_nop 0')
    import kgen
    kgen.kgen(a)
    a('s_branch k1_kfin0b')
    a('k1_kfin0:')
    a('s_waitcnt lgkmcnt(0)')
    a('k1_kfin0b:')
    a('s_getpc_b64 s[68:69]')
    a('k1_pc3:')
    a('s_add_u32 s68, s68, k1_tab_g-k1_pc3')
    a('s_addc_u32 s69, s69, 0')
    a('v_lshlrev_b32 v4, 4, v0')
    a('global_load_dwordx4 v[28:31], v4, s[68:69]')
    a('s_waitcnt lgkmcnt(0)')
    a('s_barrier')
    stamp(a, 3)
    import os
    WP = os.environ.get('WPF', '')
    if WP:
        a('s_load_dwordx4 s[64:67], s[0:1], 64')
        a('s_load_dwordx2 s[68:69], s[0:1], 80')
        a('v_and_b32 v5, 63, v0')
        a('v_lshlrev_b32 v5, 4, v5')
        a('s_mul_i32 s70, s61, 3072')
        a('s_waitcnt lgkmcnt(0)')
        for ch, b in (('g', 64), ('u', 66), ('d', 68)):
            if ch not in WP: continue
            srd(a, 72, b, 640*3072)
            for i in range(3):
                a(f'buffer_load_dwordx4 v[8:11], v5, s[72:75], s70 offen offset:{1024*i}')
    a('k1_kfin1:')
    srd(a, 36, 14, Y.SZ['KX'], Y.KX)
    a('s_waitcnt vmcnt(0)')
    TBL = 3 * WREG - 2048 + 0
    TBL = 27648 - 1312
    a('v_lshlrev_b32 v4, 4, v0')
    for i in range(4):
        a(f'v_and_b32 v{32+2*i}, 0xffff, v{28+i}')
        a(f'v_lshrrev_b32 v{33+2*i}, 16, v{28+i}')
    a('v_cmp_gt_u32 vcc, 161, v0')
    a('s_and_saveexec_b64 s[44:45], vcc')
    lab = a.label('k1_ns')
    a(f's_cbranch_execz {lab}')
    a('v_lshlrev_b32 v1, 4, v0')
    a(f'ds_read_b128 v[10:13], v1 offset:0')
    a(f'ds_read_b128 v[14:17], v1 offset:{WREG}')
    a(f'ds_read_b128 v[18:21], v1 offset:{2*WREG}')
    a('v_lshlrev_b32 v2, 3, v0')
    a('s_waitcnt lgkmcnt(0)')
    for r in range(4):
        a(f'v_add_f32 v{10+r}, v{10+r}, v{14+r}')
    for r in range(4):
        a(f'v_add_f32 v{10+r}, v{10+r}, v{18+r}')
    a('v_cvt_pk_f16_f32 v10, v10, v11')
    a('v_cvt_pk_f16_f32 v11, v12, v13')
    a(f'ds_write_b64 v2, v[10:11] offset:{TBL}')
    a(f'{lab}:')
    a('s_mov_b64 exec, s[44:45]')
    a('s_waitcnt lgkmcnt(0)')
    a('s_barrier')
    for i in range(8): a(f'ds_read_u16 v{48+i}, v{32+i}')
    a('s_lshl_b32 s40, s61, 12')
    a('s_waitcnt lgkmcnt(0)')
    for i in range(4): a(f'v_lshl_or_b32 v{40+i}, v{49+2*i}, 16, v{48+2*i}')
    a(f'buffer_store_dwordx4 v[40:43], v4, s[36:39], s40 offen {stf}')
    a('s_waitcnt vmcnt(0)') if __import__('asmgen').STAMPS else None
    stamp(a, 4)
    stamp_flush(a, 0, 5)
    a('s_endpgm')

def code_prefetch(a):
    import os
    if 'code' not in os.environ.get('WARM', 'code'): return
    lab = a.label('k1_nowarm')
    a('s_cmp_ge_u32 s2, 8')
    a(f's_cbranch_scc1 {lab}')
    a('s_getpc_b64 s[62:63]')
    a('k1_pc:')
    a('s_sub_u32 s62, s62, k1_pc-k1_kernel')
    a('s_subb_u32 s63, s63, 0')
    a('v_lshlrev_b32 v94, 7, v0')
    a('s_mov_b32 s64, code_end-k1_kernel')
    for i in range(2):
        l2 = a.label('k1_cp')
        a('v_cmp_gt_u32 vcc, s64, v94')
        a('s_and_saveexec_b64 s[66:67], vcc')
        a(f's_cbranch_execz {l2}')
        a('global_load_dword v95, v94, s[62:63]')
        a(f'{l2}:')
        a('s_mov_b64 exec, s[66:67]')
        a('v_add_u32 v94, 32768, v94')
    a(f'{lab}:')

def role_d(a, stf, base):
    a('; ---- role D: Wd fragment prep, q = s2-640')
    a('k1_roleD:')
    stamp(a, 0)
    RS = 672
    wave_id(a, 3, 1)
    a('s_load_dwordx2 s[4:5], s[0:1], 80')
    a('s_load_dwordx2 s[14:15], s[0:1], 120')
    a(f's_sub_u32 s40, s2, {base}')
    a('s_lshr_b32 s41, s40, 1')
    a('s_and_b32 s42, s40, 1')
    a('s_lshr_b32 s43, s41, 2')
    a('s_lshl_b32 s43, s43, 7')
    a('s_lshl_b32 s44, s41, 1')
    a('s_and_b32 s44, s44, 7')
    a('s_add_u32 s43, s43, s44')
    a('s_mul_i32 s43, s43, 1280')
    a('s_mul_i32 s44, s42, 640')
    a('s_add_u32 s43, s43, s44')
    a('v_and_b32 v2, 63, v0')
    a('s_waitcnt lgkmcnt(0)')
    srd(a, 16, 4, 1536*1280); srd(a, 20, 14, Y.SZ['WDP'], Y.WDP)
    for k in range(6):
        skip = a.label('k1d_skip')
        if k == 5:
            a('s_cmp_lg_u32 s3, 0')
            a(f's_cbranch_scc1 {skip}')
        a(f's_lshl_b32 s45, s3, 6')
        a(f's_add_u32 s45, s45, {256*k}')
        a('v_add_u32 v3, s45, v2')
        a('v_mul_u32_u24 v4, 1561, v3')
        a('v_lshrrev_b32 v4, 16, v4')
        a('v_mul_u32_u24 v5, 42, v4')
        a('v_sub_u32 v5, v3, v5')
        a('v_and_b32 v6, 3, v4')
        a('v_bfe_u32 v7, v4, 2, 1')
        a('v_lshl_add_u32 v6, v7, 2, v6')
        a('v_bfe_u32 v7, v4, 4, 1')
        a('v_lshl_add_u32 v6, v7, 3, v6')
        a('v_bfe_u32 v7, v4, 3, 1')
        a('v_lshl_add_u32 v6, v6, 3, v7')
        a('v_mul_u32_u24 v6, 1280, v6')
        a('v_lshl_add_u32 v6, v5, 4, v6')
        a('v_cmp_gt_u32 vcc, 40, v5')
        a('v_mov_b32 v7, 0x7ff00000')
        a('s_lshl_b32 s46, s45, 4')
        a('v_cndmask_b32 v6, v7, v6, vcc')
        a('s_mov_b32 m0, s46')
        a('s_nop 0')
        a('buffer_load_dwordx4 v6, s[16:19], s43 offen lds')
        if k == 5: a(f'{skip}:')
    a('v_lshrrev_b32 v3, 4, v2')
    a('v_bfe_u32 v4, v2, 2, 2')
    a('v_and_b32 v5, 3, v2')
    a('v_lshrrev_b32 v6, 1, v3')
    a('v_lshl_add_u32 v4, v6, 3, v4')
    a('v_and_b32 v6, 1, v3')
    a('v_lshl_add_u32 v4, v6, 2, v4')
    a(f'v_mul_u32_u24 v4, {RS}, v4')
    a('v_lshl_add_u32 v4, v5, 3, v4')
    a('s_mul_i32 s45, s3, 160')
    a('v_add_u32 v4, s45, v4')
    a('s_lshl_b32 s45, s42, 2')
    a('s_add_u32 s45, s45, s3')
    a('s_mul_i32 s45, s45, 48')
    a('s_add_u32 s45, s45, s41')
    a('s_mul_i32 s45, s45, 5120')
    a('v_lshlrev_b32 v5, 4, v2')
    a('v_add_u32 v5, s45, v5')
    a('s_movk_i32 s47, 4096')
    stamp(a, 1)
    a('s_waitcnt vmcnt(0)')
    stamp(a, 2)
    a('s_barrier')
    for m in range(5):
        a(f'ds_read_b64_tr_b16 v[{8+4*m}:{9+4*m}], v4 offset:{32*m}')
        a(f'ds_read_b64_tr_b16 v[{10+4*m}:{11+4*m}], v4 offset:{32*m + 16*RS}')
    for m in range(5):
        a(f's_waitcnt lgkmcnt({8-2*m})')
        if m < 4: a(f'buffer_store_dwordx4 v[{8+4*m}:{11+4*m}], v5, s[20:23], 0 offen offset:{1024*m} {stf}')
        else: a(f'buffer_store_dwordx4 v[{8+4*m}:{11+4*m}], v5, s[20:23], s47 offen {stf}')
    stamp(a, 3)
    a('s_waitcnt vmcnt(0)')
    stamp(a, 4)
    stamp_flush(a, 1, 5)
    a('s_endpgm')

def role_g(a, stf):
    a('; ---- role G: mod GEMV partials: WG = (64 columns, half of the rows)')
    a('k1_roleG:')
    stamp(a, 0)
    wave_id(a, 3, 1)
    a('s_load_dwordx4 s[4:7], s[0:1], 88')
    a('s_load_dwordx2 s[14:15], s[0:1], 120')
    a(f's_sub_u32 s40, s2, {G0}')
    a('s_lshr_b32 s41, s40, 1')
    a('s_and_b32 s40, s40, 1')
    a('v_and_b32 v1, 7, v0')
    a('v_lshrrev_b32 v2, 3, v0')
    a('s_mul_i32 s43, s40, 320')
    a('v_add_u32 v3, s43, v2')
    a('v_mul_u32_u24 v4, 7680, v3')
    a('v_lshl_add_u32 v4, v1, 4, v4')
    a('v_lshlrev_b32 v3, 1, v3')
    a('s_lshl_b32 s42, s41, 7')
    a('s_waitcnt lgkmcnt(0)')
    srd(a, 16, 4, 1280); srd(a, 20, 6, 640*7680); srd(a, 24, 14, Y.SZ['MOD'], Y.MOD)
    for i in range(10):
        a(f'buffer_load_ushort v{10+i}, v3, s[16:19], 0 offen offset:{64*i}')
    for i in range(10):
        a(f'buffer_load_dwordx4 v[{20+4*i}:{23+4*i}], v4, s[20:23], s42 offen')
        if i < 9: a(f's_add_u32 s42, s42, {32*7680}')
    stamp(a, 1)
    a('s_waitcnt vmcnt(10)') if False else None
    a('s_waitcnt vmcnt(10)')
    stamp(a, 2)
    for i in range(10):
        a(f'v_lshlrev_b32 v{10+i}, 16, v{10+i}')
    for i in range(10):
        a(f'v_mul_f32 v{60+i}, {f32(-LOG2E)}, v{10+i}')
    for i in range(10):
        a(f'v_exp_f32 v{60+i}, v{60+i}')
    for i in range(10):
        a(f'v_add_f32 v{60+i}, 1.0, v{60+i}')
    for i in range(10):
        a(f'v_rcp_f32 v{60+i}, v{60+i}')
    for i in range(10):
        a(f'v_mul_f32 v{10+i}, v{10+i}, v{60+i}')
    for i in range(10):
        a(f'v_cvt_pk_bf16_f32 v{60+i}, v{10+i}, v{10+i}')
    for i in range(10):
        a(f'v_lshlrev_b32 v{10+i}, 16, v{60+i}')
    ACC = 60
    for c in range(8): a(f'v_mov_b32 v{ACC+c}, 0')
    for i in range(10):
        a(f's_waitcnt vmcnt({9-i})')
        for k in range(4):
            a(f'v_lshlrev_b32 v70, 16, v{20+4*i+k}')
            a(f'v_and_b32 v71, 0xffff0000, v{20+4*i+k}')
            a(f'v_fmac_f32 v{ACC+2*k}, v{10+i}, v70')
            a(f'v_fmac_f32 v{ACC+2*k+1}, v{10+i}, v71')
    stamp(a, 3)
    a('s_nop 1')
    for c in range(8):
        a(f'v_add_f32_dpp v{ACC+c}, v{ACC+c}, v{ACC+c} row_shr:8 row_mask:0xf bank_mask:0xf bound_ctrl:0')
    a('v_lshrrev_b32 v2, 4, v0')
    a('v_lshlrev_b32 v2, 8, v2')
    a('v_lshl_add_u32 v2, v1, 5, v2')
    a('v_and_b32 v3, 15, v0')
    a('v_cmp_le_u32 vcc, 8, v3')
    a('s_and_saveexec_b64 s[44:45], vcc')
    a(f'ds_write_b128 v2, v[{ACC}:{ACC+3}]')
    a(f'ds_write_b128 v2, v[{ACC+4}:{ACC+7}] offset:16')
    a('s_mov_b64 exec, s[44:45]')
    a('s_waitcnt lgkmcnt(0)')
    a('s_barrier')
    a('v_cmp_gt_u32 vcc, 64, v0')
    a('s_and_saveexec_b64 s[44:45], vcc')
    a('s_cbranch_execz k1_exit')
    a('v_lshlrev_b32 v2, 2, v0')
    for p in range(16):
        a(f'ds_read_b32 v{10+p}, v2 offset:{256*p}')
    a('s_lshl_b32 s42, s41, 8')
    a('s_mul_i32 s43, s40, 15360')
    a('s_add_u32 s42, s42, s43')
    a('s_waitcnt lgkmcnt(0)')
    for st in (8, 4, 2, 1):
        for p in range(st):
            a(f'v_add_f32 v{10+p}, v{10+p}, v{10+p+st}')
    a(f'buffer_store_dword v10, v2, s[24:27], s42 offen {stf}')
    stamp(a, 4)
    a('s_waitcnt vmcnt(0)') if __import__('asmgen').STAMPS else None
    stamp(a, 5)
    stamp_flush(a, 0, 6)
    a('s_endpgm')

def role_s(a, stf):
    a('; ---- role S: LN1 stats')
    a('k1_roleS:')
    stamp(a, 0)
    a('s_load_dwordx2 s[4:5], s[0:1], 0')
    a('s_load_dwordx2 s[14:15], s[0:1], 120')
    a(f's_sub_u32 s40, s2, {S0}')
    a('s_lshl_b32 s40, s40, 4')
    a('v_lshrrev_b32 v1, 4, v0')
    a('v_add_u32 v1, s40, v1')
    a('v_and_b32 v2, 15, v0')
    a('v_mul_u32_u24 v3, 1280, v1')
    a('v_lshl_add_u32 v3, v2, 4, v3')
    a('s_waitcnt lgkmcnt(0)')
    srd(a, 16, 4, 2048*1280); srd(a, 20, 14, Y.SZ['ST1'], Y.ST1)
    for i in range(5):
        a(f'buffer_load_dwordx4 v[{4+4*i}:{7+4*i}], v3, s[16:19], 0 offen offset:{256*i}')
    X = 24
    stamp(a, 1)
    a('s_waitcnt vmcnt(0)') if __import__('asmgen').STAMPS else None
    stamp(a, 2)
    for i in range(5):
        a(f's_waitcnt vmcnt({4-i})')
        for k in range(4):
            a(f'v_lshlrev_b32 v{X+8*i+2*k}, 16, v{4+4*i+k}')
            a(f'v_and_b32 v{X+8*i+2*k+1}, 0xffff0000, v{4+4*i+k}')
    for c in range(4): a(f'v_add_f32 v{4+c}, v{X+c}, v{X+4+c}')
    for i in range(2, 10):
        for c in range(4): a(f'v_add_f32 v{4+c}, v{4+c}, v{X+4*i+c}')
    a('v_add_f32 v4, v4, v5')
    a('v_add_f32 v6, v6, v7')
    a('v_add_f32 v4, v4, v6')
    for sh in (8, 4, 2, 1):
        a('s_nop 1')
        a(f'v_add_f32_dpp v4, v4, v4 row_ror:{sh} row_mask:0xf bank_mask:0xf')
    a(f'v_mul_f32 v4, {f32(1/640)}, v4')
    for i in range(40): a(f'v_sub_f32 v{X+i}, v{X+i}, v4')
    for c in range(4): a(f'v_mul_f32 v{8+c}, v{X+c}, v{X+c}')
    for i in range(1, 10):
        for c in range(4): a(f'v_fmac_f32 v{8+c}, v{X+4*i+c}, v{X+4*i+c}')
    a('v_add_f32 v8, v8, v9')
    a('v_add_f32 v10, v10, v11')
    a('v_add_f32 v8, v8, v10')
    for sh in (8, 4, 2, 1):
        a('s_nop 1')
        a(f'v_add_f32_dpp v8, v8, v8 row_ror:{sh} row_mask:0xf bank_mask:0xf')
    a(f'v_mov_b32 v9, {f32(1e-5)}')
    a(f'v_fmac_f32 v9, {f32(1/640)}, v8')
    a('v_rsq_f32 v8, v9')
    a('v_lshlrev_b32 v3, 2, v1')
    a('v_mul_f32 v9, v8, v4')
    a('v_sub_f32 v9, 0, v9')
    a('v_cmp_eq_u32 vcc, 0, v2')
    a('s_and_saveexec_b64 s[44:45], vcc')
    a('s_cbranch_execz k1_exit')
    a('s_movk_i32 s46, 8192')
    a(f'buffer_store_dword v8, v3, s[20:23], 0 offen {stf}')
    a(f'buffer_store_dword v9, v3, s[20:23], s46 offen {stf}')
    stamp(a, 3)
    a('s_waitcnt vmcnt(0)')
    stamp(a, 4)
    stamp_flush(a, 0, 5)
    a('s_endpgm')

def role_t(a, stf):
    a('; ---- role T: transpose x -> XT')
    a('k1_roleT:')
    stamp(a, 0)
    wave_id(a, 3, 1)
    a('s_load_dwordx2 s[4:5], s[0:1], 0')
    a('s_load_dwordx2 s[14:15], s[0:1], 120')
    a(f's_sub_u32 s40, s2, {T0}')
    a('s_mul_i32 s41, s40, 13108')
    a('s_lshr_b32 s41, s41, 16')
    a('s_mul_i32 s42, s41, 5')
    a('s_sub_u32 s42, s40, s42')
    a('v_and_b32 v2, 63, v0')
    a('v_lshrrev_b32 v3, 4, v2')
    a('v_and_b32 v4, 15, v2')
    a('s_and_b32 s43, s3, 1')
    a('s_lshl_b32 s43, s43, 3')
    a('v_or_b32 v5, s43, v3')
    a('v_xor_b32 v5, v5, v4')
    a('v_xor_b32 v6, 4, v5')
    a('v_mul_u32_u24 v3, 1280, v3')
    a('v_lshl_add_u32 v5, v5, 4, v3')
    a('v_lshl_add_u32 v6, v6, 4, v3')
    a('s_lshl_b32 s43, s41, 6')
    a('s_lshl_b32 s44, s3, 4')
    a('s_add_u32 s43, s43, s44')
    a('s_mul_i32 s43, s43, 1280')
    a('s_lshl_b32 s45, s42, 8')
    a('s_add_u32 s43, s43, s45')
    a('s_lshl_b32 s44, s44, 8')
    a('s_waitcnt lgkmcnt(0)')
    srd(a, 16, 4, 2048*1280); srd(a, 20, 14, Y.SZ['XT'], Y.XT)
    for i in range(4):
        a('s_mov_b32 m0, s44')
        a('s_add_u32 s44, s44, 1024')
        a(f'buffer_load_dwordx4 v{5 if i < 2 else 6}, s[16:19], s43 offen lds')
        a(f's_add_u32 s43, s43, {4*1280}')
    a('v_lshrrev_b32 v3, 4, v2')
    a('v_bfe_u32 v4, v2, 2, 2')
    a('v_bfe_u32 v5, v2, 1, 1')
    a('v_and_b32 v6, 1, v2')
    a('v_lshl_add_u32 v7, v5, 3, v4')
    a('v_lshl_add_u32 v7, v3, 4, v7')
    a('v_lshl_add_u32 v8, v5, 2, v4')
    a('v_and_b32 v9, 1, v3')
    a('v_lshl_add_u32 v8, v9, 3, v8')
    a('s_lshl_b32 s45, s3, 2')
    a('v_xor_b32 v8, s45, v8')
    a('v_lshlrev_b32 v8, 4, v8')
    a('v_lshl_add_u32 v8, v7, 8, v8')
    a('v_lshl_add_u32 v8, v6, 3, v8')
    for u in range(1, 4): a(f'v_xor_b32 v{8+u}, {u<<4}, v8')
    a('v_and_b32 v4, 7, v2')
    a('v_lshlrev_b32 v4, 12, v4')
    a('v_bfe_u32 v5, v2, 3, 1')
    a('v_lshl_add_u32 v5, v3, 1, v5')
    a('v_lshl_add_u32 v4, v5, 4, v4')
    a('s_lshl_b32 s45, s42, 7')
    a('s_lshl_b32 s46, s3, 5')
    a('s_add_u32 s45, s45, s46')
    a('s_lshl_b32 s45, s45, 12')
    a('s_lshl_b32 s46, s41, 7')
    a('s_add_u32 s45, s45, s46')
    stamp(a, 1)
    a('s_waitcnt vmcnt(0)')
    stamp(a, 2)
    a('s_barrier')
    for u in range(4):
        a(f'ds_read_b64_tr_b16 v[{12+4*u}:{13+4*u}], v{8+u}')
        a(f'ds_read_b64_tr_b16 v[{14+4*u}:{15+4*u}], v{8+u} offset:1024')
    for u in range(4):
        a(f's_waitcnt lgkmcnt({6-2*u})')
        a(f'buffer_store_dwordx4 v[{12+4*u}:{15+4*u}], v4, s[20:23], s45 offen {stf}')
        if u < 3: a(f's_add_u32 s45, s45, {8*4096}')
    stamp(a, 3)
    a('s_waitcnt vmcnt(0)')
    stamp(a, 4)
    stamp_flush(a, 0, 5)
    a('s_endpgm')

def k1(a, stf=''):
    kernel_begin(a, 'k1_kernel')
    hstamp_start(a, 0)
    code_prefetch(a)
    import os
    only = os.environ.get('K1ONLY', 'KDGST')
    tgt = lambda r: f'k1_role{r}' if r in only else 'k1_exit'
    a(f's_cmp_lt_u32 s2, {G0}')
    a(f's_cbranch_scc1 {tgt("K")}')
    a(f's_cmp_lt_u32 s2, {T0}')
    a(f's_cbranch_scc1 {tgt("G")}')
    a(f's_cmp_lt_u32 s2, {S0}')
    a(f's_cbranch_scc1 {tgt("T")}')
    a(f's_cmp_lt_u32 s2, {DD0}')
    a(f's_cbranch_scc1 {tgt("S")}')
    if DINK1:
        a(f's_cmp_lt_u32 s2, {K1_GRID}')
        a('s_cbranch_scc1 k1_roleD')
    a('k1_exit:')
    a('s_endpgm')
    role_g(a, stf); role_t(a, stf); role_s(a, stf); role_k(a, stf)
    if DINK1: role_d(a, stf, DD0)

if __name__ == '__main__':
    for q in range(160): assert (q * 13108) >> 16 == q // 5
    for s in range(1344): assert (s * 1561) >> 16 == s // 42
    print('ok')
```

```python
from asmgen import *
import layout as Y
import k1 as _k1
K2_GRID = 760 if _k1.DINK1 else 856
C0, P0, D0 = 0, 640, 760
RBASE = 4160
RSTR = 1152
YBASE = 0
YSTR = 10240
K2_LDS = 4 * YSTR
K2_VGPR = 128

def role_conv(a, stf):
    a('; ---- conv role: d = s2-C0')
    a('k2_conv:')
    stamp(a, 0)
    wave_id(a, 3, 1)
    a('s_load_dwordx4 s[4:7], s[0:1], 40')
    a('s_load_dwordx2 s[14:15], s[0:1], 120')
    a(f's_sub_u32 s40, s2, {C0}')
    a('s_lshl_b32 s41, s40, 12')
    a('s_lshl_b32 s43, s40, 2')
    a('s_lshl_b32 s44, s40, 1')
    a('s_and_b32 s44, s44, 0xfffffffc')
    a('v_lshlrev_b32 v1, 4, v0')
    a('v_lshlrev_b32 v2, 5, v0')
    a('s_lshl_b32 s42, s3, 10')
    a('s_add_u32 s42, s42, 32')
    a(f's_add_u32 s52, s41, {hex(Y.XT)}')
    a(f's_add_u32 s53, s41, {hex(Y.KX)}')
    a(f's_add_u32 s41, s41, {hex(Y.X1T)}')
    a(f's_mov_b32 s54, {hex(Y.ST1)}')
    a(f's_mov_b32 s55, {hex(Y.ST1 + 8192)}')
    a('s_waitcnt lgkmcnt(0)')
    srd(a, 16, 14, Y.WS_USED)
    a('s_mov_b32 m0, s42')
    a('buffer_load_dwordx4 v[4:7], v1, s[16:19], s52 offen')
    a('buffer_load_dwordx4 v1, s[16:19], s53 offen lds')
    a('buffer_load_dwordx4 v[16:19], v2, s[16:19], s54 offen')
    a('buffer_load_dwordx4 v[20:23], v2, s[16:19], s54 offen offset:16')
    a('buffer_load_dwordx4 v[24:27], v2, s[16:19], s55 offen')
    a('buffer_load_dwordx4 v[28:31], v2, s[16:19], s55 offen offset:16')
    a(f's_add_u32 s43, s43, {hex(Y.MOD)}')
    a('s_add_u32 s12, s14, s43')
    a('s_addc_u32 s13, s15, 0')
    for (dst, off) in ((45, 0), (46, 2560), (47, 5120)):
        a(f's_load_dword s{dst}, s[12:13], {off}')
        a(f's_load_dword s{dst+11}, s[12:13], {off + 15360}')
    a('s_load_dword s48, s[4:5], s44')
    a('s_load_dword s49, s[6:7], s44')
    a('v_mov_b32 v44, 0')
    a('v_lshrrev_b32 v45, 5, v0')
    a(f'v_mul_u32_u24 v45, {RSTR}, v45')
    a('v_and_b32 v46, 31, v0')
    a('v_lshl_add_u32 v45, v46, 2, v45')
    a('v_cmp_gt_u32 vcc, 128, v0')
    a('s_and_saveexec_b64 s[52:53], vcc')
    a(f'ds_write_b32 v45, v44 offset:{RBASE + 1024}')
    a('s_mov_b64 exec, s[52:53]')
    a('v_lshlrev_b32 v45, 2, v0')
    a('v_cmp_gt_u32 vcc, 8, v0')
    a('s_and_saveexec_b64 s[52:53], vcc')
    a('ds_write_b32 v45, v44')
    a('s_mov_b64 exec, s[52:53]')
    a('s_waitcnt lgkmcnt(0)')
    a('s_and_b32 s51, s40, 1')
    a('s_lshl_b32 s51, s51, 4')
    a('s_lshr_b32 s48, s48, s51')
    a('s_lshl_b32 s48, s48, 16')
    a('s_lshr_b32 s49, s49, s51')
    a('s_lshl_b32 s49, s49, 16')
    a('v_mov_b32 v46, s48')
    a(f'v_mul_f32 v46, {f32(1.4426950408889634)}, v46')
    a('v_exp_f32 v46, v46')
    for i, r in enumerate((45, 46, 47)):
        a(f'v_mov_b32 v{50+i}, s{r}')
        a(f'v_add_f32 v{50+i}, s{r+11}, v{50+i}')
    for i in range(3): bf16r(a, 50+i, 53)
    a('v_add_f32 v47, 1.0, v51')
    bf16r(a, 46, 48)
    bf16r(a, 47, 48)
    a('v_add_f32 v3, v46, v46')
    a('v_mul_f32 v3, v3, v52')
    a('v_mul_f32 v52, s49, v52')
    a('s_nop 0')
    a('v_readfirstlane_b32 s47, v52')
    stamp(a, 1)
    a('s_waitcnt vmcnt(0)')
    stamp(a, 2)
    for k in range(4):
        a(f'v_lshlrev_b32 v{8+2*k}, 16, v{4+k}')
        a(f'v_and_b32 v{9+2*k}, 0xffff0000, v{4+k}')
    for i in range(8): a(f'v_fma_f32 v{8+i}, v{8+i}, v{16+i}, v{24+i}')
    for i in range(8): a(f'v_fma_f32 v{8+i}, v{8+i}, v47, v50')
    a('v_lshlrev_b32 v45, 2, v0')
    a(f'v_sub_u32 v45, {RBASE + 1020}, v45')
    for c in range(4):
        a(f'v_cvt_pk_f16_f32 v{56+c}, v{12+c}, v{8+c}')
        a(f'ds_write_b32 v45, v{56+c} offset:{c*RSTR}')
    a('v_and_b32 v44, 63, v0')
    a('v_lshrrev_b32 v45, 4, v44')
    a('v_bfe_u32 v46, v44, 2, 2')
    a('v_and_b32 v47, 3, v44')
    a('v_add_u32 v46, v46, v47')
    a('v_lshlrev_b32 v46, 3, v46')
    a('v_lshl_add_u32 v1, v45, 6, v46')
    a('v_add_u32 v1, 8, v1')
    a('v_and_b32 v46, 15, v44')
    a(f's_mul_i32 s51, s3, {RSTR}')
    a(f's_add_u32 s51, s51, {RBASE + 1016 - 896}')
    a('v_lshlrev_b32 v47, 3, v46')
    a('v_sub_u32 v2, s51, v47')
    a('v_lshl_add_u32 v2, v45, 4, v2')
    a('s_waitcnt lgkmcnt(0)')
    a('s_barrier')
    stamp(a, 3)
    F, ACC, G = 16, 80, 112
    def rdF(w):
        a(f'ds_read_b64_tr_b16 v[{F+4*w}:{F+4*w+1}], v1 offset:{256*w}')
        a(f'ds_read_b64_tr_b16 v[{F+4*w+2}:{F+4*w+3}], v1 offset:{256*w+32}')
    def rdG(s):
        sl = (s + 1) % 4
        a(f'ds_read_b64 v[{G+4*sl}:{G+4*sl+1}], v2 offset:{64*(14-s)}')
        a(f'ds_read_b64 v[{G+4*sl+2}:{G+4*sl+3}], v2 offset:{64*(14-s)+8}')
    rdG(-1)
    for w in range(1, 16, 2): rdF(w)
    for w in (0, 2, 4, 6): rdF(w)
    a('s_waitcnt lgkmcnt(8)')
    started = set()
    def mf(t, w, sl):
        c = f'v[{ACC+4*t}:{ACC+4*t+3}]' if t in started else '0'
        started.add(t)
        a(f'v_mfma_f32_16x16x32_f16 v[{ACC+4*t}:{ACC+4*t+3}], v[{F+4*w}:{F+4*w+3}], v[{G+4*sl}:{G+4*sl+3}], {c}')
    fill = [lambda: rdF(8), lambda: rdF(10), lambda: rdF(12), lambda: rdF(14), lambda: rdG(0), lambda: rdG(1), lambda: rdG(2)]
    for t in range(8):
        mf(t, 2*t + 1, 0)
        if t < 7: fill[t]()
    rdG(3)
    for s in range(0, 15):
        later = min(3, 14 - s)
        a(f's_waitcnt lgkmcnt({2*later})')
        sl = (s + 1) % 4
        for t in range(8):
            w = 2*t - s
            if 0 <= w <= 15: mf(t, w, sl)
        if s + 4 <= 14: rdG(s + 4)
    stamp(a, 4)
    a('v_and_b32 v1, 15, v0')
    a('v_bfe_u32 v2, v0, 4, 2')
    a('v_mul_u32_u24 v1, 80, v1')
    a('v_lshl_add_u32 v1, v2, 4, v1')
    a(f's_mul_i32 s51, s3, {YSTR}')
    a(f's_add_u32 s51, s51, {YBASE}')
    a('v_add_u32 v1, s51, v1')
    a('s_waitcnt lgkmcnt(0)')
    a('s_barrier')
    for t in range(8):
        a(f'ds_write_b128 v1, v[{ACC+4*t}:{ACC+4*t+3}] offset:{1280*t}')
    a('v_lshrrev_b32 v1, 1, v0')
    a('v_mul_u32_u24 v1, 80, v1')
    a('v_and_b32 v2, 1, v0')
    a('v_lshl_add_u32 v1, v2, 5, v1')
    a('v_lshlrev_b32 v2, 4, v2')
    a('v_add_u32 v2, v1, v2')
    a('v_subrev_u32 v2, 32, v2')
    for c in range(1, 4):
        for r in range(4): a(f'v_mov_b32 v{16+12*c+r}, 0')
    a('s_waitcnt lgkmcnt(0)')
    a('s_barrier')
    stamp(a, 5)
    for c in range(4):
        a(f'ds_read_b128 v[{16+12*c+4}:{16+12*c+7}], v1 offset:{YBASE + c*YSTR}')
        a(f'ds_read_b128 v[{16+12*c+8}:{16+12*c+11}], v1 offset:{YBASE + c*YSTR + 16}')
    a('v_cmp_lt_u32 vcc, 0, v0')
    a('s_and_saveexec_b64 s[52:53], vcc')
    for c in range(1, 4):
        a(f'ds_read_b128 v[{16+12*c}:{16+12*c+3}], v2 offset:{YBASE + c*YSTR}')
    a('s_mov_b64 exec, s[52:53]')
    a('v_lshlrev_b32 v1, 4, v0')
    a('s_waitcnt lgkmcnt(0)')
    for i in range(8):
        a(f'v_add_f32 v{64+i}, v{16+4+i}, v{16+12+4+i-1}')
    for c in range(2, 4):
        for i in range(8):
            a(f'v_add_f32 v{64+i}, v{64+i}, v{16+12*c+4+i-c}')
    for k in range(4):
        a(f'v_lshlrev_b32 v{72+2*k}, 16, v{4+k}')
        a(f'v_and_b32 v{73+2*k}, 0xffff0000, v{4+k}')
    for i in range(8): a(f'v_fma_f32 v{72+i}, v{8+i}, s47, v{72+i}')
    for i in range(8): a(f'v_fma_f32 v{64+i}, v{64+i}, v3, v{72+i}')
    for k in range(4): a(f'v_cvt_pk_bf16_f32 v{72+k}, v{64+2*k}, v{65+2*k}')
    a(f'buffer_store_dwordx4 v[72:75], v1, s[16:19], s41 offen {stf}')
    stamp(a, 6)
    a('s_waitcnt vmcnt(0)')
    stamp(a, 7)
    stamp_flush(a, 1, 8)
    a('s_endpgm')

def role_p(a, stf):
    a('; ---- role P: W prep, q = s2 (<120)')
    a('k2_prep:')
    stamp(a, 0)
    wave_id(a, 3, 1)
    a('s_load_dwordx4 s[4:7], s[0:1], 64')
    a('s_load_dwordx2 s[14:15], s[0:1], 120')
    a(f's_sub_u32 s61, s2, {P0}')
    a('s_cmp_ge_u32 s61, 60')
    a('s_cselect_b32 s40, 1, 0')
    a('s_mul_i32 s41, s40, 60')
    a('s_sub_u32 s41, s61, s41')
    a('s_mul_i32 s42, s41, 6554')
    a('s_lshr_b32 s42, s42, 16')
    a('s_mul_i32 s43, s42, 10')
    a('s_sub_u32 s43, s41, s43')
    a('s_lshl_b32 s44, s43, 2')
    a('s_add_u32 s44, s44, s3')
    a('v_and_b32 v1, 63, v0')
    a('v_and_b32 v2, 31, v1')
    a('v_lshrrev_b32 v3, 5, v1')
    a(f'v_mul_u32_u24 v4, {8*3072}, v3')
    a('v_lshl_add_u32 v4, v2, 4, v4')
    a('v_lshlrev_b32 v5, 5, v3')
    a(f's_mul_i32 s45, s44, {16*3072}')
    a('s_lshl_b32 s46, s42, 9')
    a('s_add_u32 s45, s45, s46')
    a('s_lshl_b32 s46, s44, 6')
    a(f's_add_u32 s47, s46, {3*640*4}')
    a(f's_add_u32 s46, s46, {4*640*4}')
    a('s_waitcnt lgkmcnt(0)')
    a('s_cmp_eq_u32 s40, 0')
    a('s_cselect_b32 s4, s4, s6')
    a('s_cselect_b32 s5, s5, s7')
    srd(a, 16, 4, 640*3072); srd(a, 20, 14, Y.SZ['MOD'], Y.MOD); srd(a, 24, 14, Y.SZ['WP'], Y.WP); srd(a, 28, 14, Y.SZ['STP'], Y.STP)
    lab = a.label('k2_zf')
    a('s_cmp_lg_u32 s61, 0')
    a(f's_cbranch_scc1 {lab}')
    srd(a, 32, 14, Y.SZ['FLG'], Y.FLG)
    a('v_lshlrev_b32 v6, 4, v0')
    for r in range(4): a(f'v_mov_b32 v{8+r}, 0')
    for i in range(5):
        a(f'buffer_store_dwordx4 v[8:11], v6, s[32:35], 0 offen {stf}')
        a('v_add_u32 v6, 4096, v6')
    a('s_nop 1')
    a(f'{lab}:')
    a('buffer_load_dwordx4 v[8:11], v5, s[20:23], s46 offen')
    a('buffer_load_dwordx4 v[12:15], v5, s[20:23], s46 offen offset:16')
    a('buffer_load_dwordx4 v[16:19], v5, s[20:23], s47 offen')
    a('buffer_load_dwordx4 v[20:23], v5, s[20:23], s47 offen offset:16')
    a('s_add_u32 s46, s46, 15360')
    a('s_add_u32 s47, s47, 15360')
    a('buffer_load_dwordx4 v[108:111], v5, s[20:23], s46 offen')
    a('buffer_load_dwordx4 v[112:115], v5, s[20:23], s46 offen offset:16')
    a('buffer_load_dwordx4 v[116:119], v5, s[20:23], s47 offen')
    a('buffer_load_dwordx4 v[120:123], v5, s[20:23], s47 offen offset:16')
    Wr = 24
    for j in range(8):
        a(f'buffer_load_dwordx4 v[{Wr+4*j}:{Wr+4*j+3}], v4, s[16:19], s45 offen')
        if j < 7: a('s_add_u32 s45, s45, 3072')
    OUT, STv, TM = 56, 88, 104
    for q in range(16): a(f'v_mov_b32 v{STv+q}, 0')
    a('s_waitcnt vmcnt(8)')
    for j in range(16): a(f'v_add_f32 v{8+j}, v{8+j}, v{108+j}')
    for j in range(16):
        a(f'v_cvt_pk_bf16_f32 v{TM}, v{8+j}, v{8+j}')
        a(f'v_lshlrev_b32 v{8+j}, 16, v{TM}')
    for j in range(8): a(f'v_add_f32 v{8+j}, 1.0, v{8+j}')
    for j in range(8):
        a(f'v_cvt_pk_bf16_f32 v{TM}, v{8+j}, v{8+j}')
        a(f'v_lshlrev_b32 v{8+j}, 16, v{TM}')
    for jp in range(4):
        a(f's_waitcnt vmcnt({6-2*jp})')
        j0, j1 = 2*jp, 2*jp+1
        for k in range(4):
            a(f'v_lshlrev_b32 v{TM}, 16, v{Wr+4*j0+k}')
            a(f'v_and_b32 v{TM+1}, 0xffff0000, v{Wr+4*j0+k}')
            a(f'v_lshlrev_b32 v{TM+2}, 16, v{Wr+4*j1+k}')
            a(f'v_and_b32 v{TM+3}, 0xffff0000, v{Wr+4*j1+k}')
            a(f'v_fmac_f32 v{STv+4*k+1}, v{16+j0}, v{TM}')
            a(f'v_fmac_f32 v{STv+4*k+3}, v{16+j0}, v{TM+1}')
            a(f'v_fmac_f32 v{STv+4*k+1}, v{16+j1}, v{TM+2}')
            a(f'v_fmac_f32 v{STv+4*k+3}, v{16+j1}, v{TM+3}')
            a(f'v_mul_f32 v{TM}, v{8+j0}, v{TM}')
            a(f'v_mul_f32 v{TM+1}, v{8+j0}, v{TM+1}')
            a(f'v_mul_f32 v{TM+2}, v{8+j1}, v{TM+2}')
            a(f'v_mul_f32 v{TM+3}, v{8+j1}, v{TM+3}')
            a(f'v_add_f32 v{STv+4*k}, v{STv+4*k}, v{TM}')
            a(f'v_add_f32 v{STv+4*k+2}, v{STv+4*k+2}, v{TM+1}')
            a(f'v_add_f32 v{STv+4*k}, v{STv+4*k}, v{TM+2}')
            a(f'v_add_f32 v{STv+4*k+2}, v{STv+4*k+2}, v{TM+3}')
            a(f'v_cvt_pk_bf16_f32 v{OUT+4*(2*k)+jp}, v{TM}, v{TM+2}')
            a(f'v_cvt_pk_bf16_f32 v{OUT+4*(2*k+1)+jp}, v{TM+1}, v{TM+3}')
    a('v_and_b32 v6, 15, v1')
    a('v_lshlrev_b32 v6, 4, v6')
    a('v_lshl_add_u32 v6, v3, 9, v6')
    a('s_lshl_b32 s51, s40, 8')
    a('v_add_u32 v6, s51, v6')
    a('v_bfe_u32 v7, v1, 4, 1')
    a('v_cmp_eq_u32 vcc, 1, v7')
    for q in range(8):
        for hf in range(2):
            a('s_lshl_b32 s48, s42, 4')
            a(f's_add_u32 s48, s48, {8*hf + q}')
            a('s_mul_i32 s49, s48, 10923')
            a('s_lshr_b32 s49, s49, 16')
            a('s_mul_i32 s50, s49, 6')
            a('s_sub_u32 s50, s48, s50')
            a('s_mul_i32 s49, s49, 40')
            a('s_add_u32 s49, s49, s44')
            a('s_mul_i32 s49, s49, 6')
            a('s_add_u32 s49, s49, s50')
            a(f's_lshl_b32 s{52+hf}, s49, 10')
        a('v_mov_b32 v4, s52')
        a('v_mov_b32 v5, s53')
        a('v_cndmask_b32 v4, v4, v5, vcc')
        a('v_add_u32 v4, v4, v6')
        a(f'buffer_store_dwordx4 v[{OUT+4*q}:{OUT+4*q+3}], v4, s[24:27], 0 offen {stf}')
    a('s_lshl_b32 s48, s3, 12')
    a('v_lshlrev_b32 v5, 11, v3')
    a('v_lshl_add_u32 v5, v2, 6, v5')
    a('v_add_u32 v5, s48, v5')
    for k in range(4):
        a(f'ds_write_b128 v5, v[{STv+4*k}:{STv+4*k+3}] offset:{16*k}')
    a('s_waitcnt lgkmcnt(0)')
    a('s_barrier')
    a('v_lshlrev_b32 v5, 3, v0')
    for p in range(8):
        a(f'ds_read_b64 v[{8+2*p}:{9+2*p}], v5 offset:{2048*p}')
    a('v_and_b32 v24, 7, v0')
    a('v_lshrrev_b32 v26, 7, v0')
    a('v_lshl_add_u32 v24, v26, 3, v24')
    a('s_lshl_b32 s48, s42, 4')
    a('v_add_u32 v24, s48, v24')
    a('v_mul_u32_u24 v25, 10923, v24')
    a('v_lshrrev_b32 v25, 16, v25')
    a('v_mul_u32_u24 v26, 6, v25')
    a('v_sub_u32 v26, v24, v26')
    a('s_lshl_b32 s48, s43, 4')
    a('v_add_u32 v25, s48, v25')
    a('v_mul_u32_u24 v25, 192, v25')
    a('v_lshl_add_u32 v25, v26, 5, v25')
    a('v_bfe_u32 v26, v0, 3, 4')
    a('v_add_u32 v25, v25, v26')
    a('s_lshl_b32 s48, s40, 4')
    a('v_add_u32 v25, s48, v25')
    a('v_lshlrev_b32 v25, 3, v25')
    a('s_waitcnt lgkmcnt(0)')
    for st in (4, 2, 1):
        for p in range(st):
            a(f'v_add_f32 v{8+2*p}, v{8+2*p}, v{8+2*(p+st)}')
            a(f'v_add_f32 v{9+2*p}, v{9+2*p}, v{9+2*(p+st)}')
    a(f'buffer_store_dwordx2 v[8:9], v25, s[28:31], 0 offen {stf}')
    stamp(a, 1)
    a('s_waitcnt vmcnt(0)')
    stamp(a, 2)
    stamp_flush(a, 1, 3)
    a('s_endpgm')

def k2(a, stf=''):
    kernel_begin(a, 'k2_kernel')
    hstamp_start(a, 1)
    a(f's_cmp_lt_u32 s2, {P0}')
    a('s_cbranch_scc1 k2_conv')
    a(f's_cmp_lt_u32 s2, {D0}')
    a('s_cbranch_scc1 k2_prep')
    a(f's_cmp_lt_u32 s2, {K2_GRID}')
    a('s_cbranch_scc1 k1_roleD')
    a('k2_exit:')
    a('s_endpgm')
    role_conv(a, stf); role_p(a, stf)
    import k1
    if not k1.DINK1: k1.role_d(a, stf, D0)
if __name__ == '__main__':
    for q in range(60): assert (q * 6554) >> 16 == q // 10
    for q in range(96): assert (q * 10923) >> 16 == q // 6
    print('ok')
```

```python
from asmgen import *
import asmgen, os
import layout as Y
ABL = os.environ.get('K3ABL', '').split(',')
K34_GRID = 256
K34_BLOCK = 512
NSLOT = 7
SLOT = 20480
FOLDA = NSLOT * SLOT
FOLDB = FOLDA + 3072
RARR = FOLDB + 2048
X1L = RARR + 1024
GPART = X1L
K34_LDS = X1L + 10240
RED = 0
K34_VGPR = 256
K34_ACC = 176
LOG2E = 1.4426950408889634
GC0 = -2 * 0.7978845608028654 * LOG2E
GC1 = GC0 * 0.044715
WA, TA_, WB, TB_, ACC = 20, 32, 40, 52, 64
SPIN = 1 << 22

class VM:
    def __init__(self, a): self.a = a; self.ops = []
    def op(self, text, tag, optional=False):
        self.a(text); self.ops.append((tag, optional))
    def note(self, tag, optional=False): self.ops.append((tag, optional))
    def wait(self, tag):
        last = max(i for i, (t, o) in enumerate(self.ops) if t == tag)
        n = sum(1 for (t, o) in self.ops[last+1:] if not o)
        assert n <= 63, (tag, n)
        self.a(f's_waitcnt vmcnt({n})')

def reads(W, T_, vW, vT0, vT1, sub):
    r = []
    for n, vT in enumerate((vT0, vT1)):
        r.append(f'ds_read_b64_tr_b16 v[{T_+4*n}:{T_+4*n+1}], v{vT} offset:{sub*4096}')
        r.append(f'ds_read_b64_tr_b16 v[{T_+4*n+2}:{T_+4*n+3}], v{vT} offset:{sub*4096+1024}')
    for j in range(3):
        r.append(f'ds_read_b128 v[{W+4*j}:{W+4*j+3}], v{vW} offset:{8192 + (sub*6+j)*1024}')
    return [r[0], r[1], r[4], r[2], r[3], r[5], r[6]]

def mfmas(a, W, T_, fillers, first=False):
    n = len(fillers); k = 0; idx = 0
    for j in range(3):
        for nn in range(2):
            acc = ACC + (2*j + nn)*16
            c = '0' if first else f'v[{acc}:{acc+15}]'
            a(f'v_mfma_f32_32x32x16_bf16 v[{acc}:{acc+15}], v[{W+4*j}:{W+4*j+3}], v[{T_+4*nn}:{T_+4*nn+3}], {c}')
            idx += 1
            upto = min(n, 2*idx) if idx < 6 else n
            while k < upto:
                a(fillers[k]); k += 1

def mstep(a, first=False, last=False, bar=True, midbar=False):
    if not first: a('s_waitcnt lgkmcnt(0)')
    if bar:
        trace(a, 170, 7)
        a('s_barrier')
        trace(a, 170, 7)
    if first:
        stamp(a, 2)
        for r in reads(WA, TA_, 4, 3, 9, 0): a(r)
        a('v_mov_b32 v1, v3'); a('v_mov_b32 v8, v9'); a('v_mov_b32 v2, v4')
        a(f's_mov_b32 s47, {SLOT}')
        a('v_add_u32 v3, s47, v5'); a('v_add_u32 v9, s47, v7'); a('v_add_u32 v4, s47, v6')
        a('s_waitcnt lgkmcnt(0)')
    mfmas(a, WA, TA_, reads(WB, TB_, 2, 1, 8, 1), first)
    a('s_waitcnt lgkmcnt(0)')
    if midbar:
        trace(a, 170, 7)
        a('s_barrier')
        trace(a, 170, 7)
    f = []
    if not last:
        f = reads(WA, TA_, 4, 3, 9, 0)
        f += ['v_mov_b32 v1, v3', 'v_mov_b32 v8, v9', 'v_mov_b32 v2, v4',
              f's_add_u32 s47, s47, {SLOT}', f's_cmp_eq_u32 s47, {NSLOT*SLOT}', 's_cselect_b32 s47, 0, s47',
              'v_add_u32 v3, s47, v5', 'v_add_u32 v9, s47, v7', 'v_add_u32 v4, s47, v6']
    mfmas(a, WB, TB_, f)

def slices(a, stf):
    a('v_and_b32 v10, 15, v16')
    a('v_lshlrev_b32 v10, 12, v10')
    a('v_lshrrev_b32 v11, 4, v16')
    a('s_lshl_b32 s44, s3, 2')
    a('v_add_u32 v11, s44, v11')
    a('v_lshl_add_u32 v10, v11, 4, v10')
    a('s_lshl_b32 s44, s41, 16')
    a('s_lshl_b32 s45, s40, 8')
    a('s_add_u32 s44, s44, s45')
    a('v_add_u32 v10, s44, v10')
    a('v_add_u32 v11, 0x100000, v10')
    a('v_add_u32 v12, 0x200000, v10')
    for i in range(3):
        a(f'buffer_load_dwordx4 v[{20+4*i}:{23+4*i}], v{10+i}, s[16:19], 0 offen')
    S = 32
    for i in range(3):
        a(f's_waitcnt vmcnt({2-i})')
        for k in range(4):
            d = 20 + 4*i + k
            a(f'v_lshlrev_b32 v48, 16, v{d}')
            a(f'v_and_b32 v49, 0xffff0000, v{d}')
            if i == 0:
                a(f'v_mov_b32 v{S+2*k}, v48'); a(f'v_mov_b32 v{S+2*k+1}, v49')
                a(f'v_mul_f32 v{S+8+2*k}, v48, v48'); a(f'v_mul_f32 v{S+8+2*k+1}, v49, v49')
            else:
                a(f'v_add_f32 v{S+2*k}, v{S+2*k}, v48'); a(f'v_add_f32 v{S+2*k+1}, v{S+2*k+1}, v49')
                a(f'v_fmac_f32 v{S+8+2*k}, v48, v48'); a(f'v_fmac_f32 v{S+8+2*k+1}, v49, v49')
    for sh in (8, 4, 2, 1):
        for q in range(16):
            a(f'v_add_f32_dpp v{S+q}, v{S+q}, v{S+q} row_ror:{sh} row_mask:0xf bank_mask:0xf')
    n = 16
    for bit in range(4):
        a(f'v_and_b32 v48, {1 << bit}, v16')
        a('v_cmp_ne_u32 vcc, 0, v48')
        a('s_nop 1')
        n //= 2
        for p in range(n): a(f'v_cndmask_b32 v{S+p}, v{S+2*p}, v{S+2*p+1}, vcc')
    a('v_lshlrev_b32 v10, 2, v0')
    a('s_lshl_b32 s44, s40, 4')
    a('s_add_u32 s44, s44, s41')
    a('s_lshl_b32 s44, s44, 10')
    a(f'buffer_store_dword v{S}, v10, s[68:71], s44 offen sc1')
    a('s_waitcnt vmcnt(0)')

def mfma_path(a, stf):
    if 'noprio' not in ABL: a('s_setprio 2')
    trace_init(a, 170, 7); trace(a, 170, 7)
    a('v_and_b32 v16, 63, v0')
    a('s_lshr_b32 s56, s3, 1')
    a('s_and_b32 s57, s3, 1')
    a('v_lshlrev_b32 v6, 4, v16')
    a('s_mul_i32 s44, s57, 3072')
    a('v_add_u32 v6, s44, v6')
    a('v_lshrrev_b32 v11, 5, v16')
    a('v_bfe_u32 v12, v16, 2, 2')
    a('v_lshl_add_u32 v13, v11, 3, v12')
    a('v_bfe_u32 v14, v16, 4, 1')
    a('v_bfe_u32 v15, v16, 1, 1')
    a('v_lshl_add_u32 v14, v14, 1, v15')
    a('s_lshl_b32 s44, s56, 3')
    a('v_add_u32 v14, s44, v14')
    a('v_lshlrev_b32 v15, 2, v12')
    a('v_xor_b32 v14, v14, v15')
    a('v_lshlrev_b32 v14, 4, v14')
    a('v_lshl_add_u32 v14, v13, 8, v14')
    a('v_and_b32 v15, 1, v16')
    a('v_lshl_add_u32 v5, v15, 3, v14')
    a('v_xor_b32 v7, 64, v5')
    a('v_mov_b32 v3, v5'); a('v_mov_b32 v9, v7'); a('v_mov_b32 v4, v6')
    stamp(a, 1)
    mstep(a, first=True)
    mstep(a, bar=False, midbar=True)
    a('s_mov_b32 s48, 8')
    a('k34_mloop:')
    mstep(a); mstep(a, bar=False)
    a('s_sub_u32 s48, s48, 1')
    a('s_cmp_lg_u32 s48, 0')
    a('s_cbranch_scc1 k34_mloop')
    mstep(a); mstep(a, last=True, bar=False)
    stamp(a, 3)
    a('v_and_b32 v1, 31, v16')
    a('v_lshlrev_b32 v3, 3, v1')
    a('v_lshlrev_b32 v1, 4, v1')
    a('s_mul_i32 s44, s57, 1536')
    a(f's_add_u32 s44, s44, {FOLDA}')
    a('v_add_u32 v2, s44, v1')
    a('s_lshl_b32 s44, s56, 10')
    a(f's_add_u32 s44, s44, {FOLDB}')
    a('v_add_u32 v1, s44, v1')
    a('s_lshl_b32 s44, s56, 9')
    a(f's_add_u32 s44, s44, {RARR}')
    a('v_add_u32 v3, s44, v3')
    for r in range(WA, TA_ + 8): a(f'v_mov_b32 v{r}, 0')
    trace(a, 170, 7)
    a('s_barrier')
    trace(a, 170, 7)
    a('s_mov_b32 exec_hi, 0')
    for n in range(2): a(f'ds_read_b128 v[{TA_+4*n}:{TA_+4*n+3}], v1 offset:{512*n}')
    for j in range(3): a(f'ds_read_b128 v[{WA+4*j}:{WA+4*j+3}], v2 offset:{512*j}')
    a('s_mov_b32 exec_hi, -1')
    a('ds_read_b64 v[10:11], v3')
    a('ds_read_b64 v[12:13], v3 offset:256')
    a('v_bfe_u32 v2, v16, 4, 1')
    a('v_lshlrev_b32 v2, 10, v2')
    a('v_lshrrev_b32 v9, 5, v16')
    a('v_lshl_add_u32 v2, v9, 8, v2')
    a('v_and_b32 v3, 15, v16')
    a('v_lshl_add_u32 v2, v3, 4, v2')
    a('s_lshl_b32 s44, s40, 1')
    a('s_add_u32 s44, s44, s56')
    a('s_mul_i32 s44, s44, 196608')
    a('s_mul_i32 s45, s41, 6')
    a('s_mul_i32 s46, s57, 3')
    a('s_add_u32 s45, s45, s46')
    a('s_waitcnt lgkmcnt(0)')
    mfmas(a, WA, TA_, [])
    KC = {0: (4, 6, 8), 1: (14, 16, 18)}
    for n in range(2):
        r = 10 + 2*n
        k0, k1, ir2 = KC[n]
        if n == 1: pass
        a(f'v_mul_f32 v{k0}, {f32(GC0)}, v{r}')
        a(f'v_mul_f32 v{k1}, v{r}, v{r}')
        a(f'v_mov_b32 v{ir2}, v{r+1}')
        a(f'v_mul_f32 v{k1}, v{k1}, v{r}')
        a(f'v_mul_f32 v{k1}, {f32(GC1)}, v{k1}')
    a('s_nop 7')
    stamp(a, 4)
    TM = 20
    for jj in range(3):
        a(f's_add_u32 s46, s45, {jj}')
        a('s_lshr_b32 s47, s46, 1')
        a('s_lshl_b32 s47, s47, 12')
        a('s_and_b32 s46, s46, 1')
        a('s_lshl_b32 s46, s46, 9')
        a('s_add_u32 s47, s47, s46')
        a('s_add_u32 s47, s47, s44')
        for n in range(2):
            acc = ACC + (2*jj + n)*16
            k0, k1, ir2 = KC[n]
            P = lambda b: f'v[{b}:{b+1}]'
            for e in range(0, 8, 2): a(f'v_pk_mul_f32 {P(TM+e)}, {P(acc+e)}, {P(acc+e)}')
            for e in range(0, 8, 2): a(f'v_pk_fma_f32 {P(TM+e)}, {P(TM+e)}, {P(k1)}, {P(k0)} op_sel_hi:[1,0,0]')
            for e in range(0, 8, 2): a(f'v_pk_mul_f32 {P(TM+e)}, {P(acc+e)}, {P(TM+e)}')
            for e in range(8): a(f'v_exp_f32 v{TM+e}, v{TM+e}')
            for e in range(0, 8, 2): a(f'v_pk_mul_f32 {P(acc+e)}, {P(acc+e)}, {P(acc+8+e)}')
            for e in range(0, 8, 2): a(f'v_pk_fma_f32 {P(TM+e)}, {P(TM+e)}, {P(ir2)}, {P(ir2)} op_sel_hi:[1,0,0]')
            for e in range(8): a(f'v_rcp_f32 v{TM+e}, v{TM+e}')
            a('s_nop 0')
            for e in range(0, 8, 2): a(f'v_pk_mul_f32 {P(acc+e)}, {P(acc+e)}, {P(TM+e)}')
            o = 28 + 4*(2*jj + n)
            for k in range(4): a(f'v_cvt_pk_bf16_f32 v{o+k}, v{acc+2*k}, v{acc+2*k+1}')
            a(f'buffer_store_dwordx4 v[{o}:{o+3}], v2, s[28:31], s47 offen offset:{2048*n} {stf}')
    stamp(a, 5)
    a('s_waitcnt vmcnt(0)')
    stamp(a, 6)
    a('s_lshl_b32 s44, s40, 1')
    a('s_add_u32 s44, s44, s56')
    a('s_lshl_b32 s44, s44, 2')
    a('s_lshr_b32 s45, s41, 2')
    a('s_add_u32 s44, s44, s45')
    a('s_lshl_b32 s44, s44, 7')
    a('s_add_u32 s44, s44, 2048')
    a('s_mov_b64 exec, 1')
    a('v_mov_b32 v10, s44')
    a('v_mov_b32 v11, 1')
    a('buffer_atomic_add v11, v10, s[32:35], 0 offen sc1')
    a('s_mov_b64 exec, -1')
    trace(a, 170, 7)
    a('s_barrier')
    trace(a, 170, 7)
    a('v_lshrrev_b32 v2, 3, v16') if False else None
    a('v_and_b32 v9, 63, v0')
    a('v_lshrrev_b32 v2, 3, v9')
    a('v_lshlrev_b32 v2, 12, v2')
    a('v_and_b32 v3, 7, v9')
    a('v_lshl_add_u32 v2, v3, 4, v2')
    a('s_and_b32 s50, s41, 7')
    a('s_mul_i32 s50, s50, 80')
    a('s_lshl_b32 s51, s3, 3')
    a('s_add_u32 s50, s50, s51')
    a('s_lshl_b32 s50, s50, 12')
    a('s_lshr_b32 s51, s41, 3')
    a('s_lshl_b32 s52, s40, 1')
    a('s_add_u32 s51, s51, s52')
    a('s_lshl_b32 s51, s51, 7')
    a('s_add_u32 s50, s50, s51')
    a('s_lshl_b32 s51, s3, 10')
    a(f's_add_u32 s51, s51, {X1L}')
    for k in range(3):
        skip = a.label('k34_skip')
        if k == 2:
            a('s_cmp_ge_u32 s3, 2')
            a(f's_cbranch_scc1 {skip}')
        a('s_mov_b32 m0, s51')
        a('s_add_u32 s51, s51, 4096')
        a('buffer_load_dwordx4 v2, s[16:19], s50 offen lds')
        a(f's_add_u32 s50, s50, {32*4096}')
        if k == 2: a(f'{skip}:')
    lab = a.label('k34_nogb')
    a('v_cmp_gt_u32 vcc, 80, v0')
    a('s_and_saveexec_b64 s[52:53], vcc')
    a(f's_cbranch_execz {lab}')
    a('v_lshlrev_b32 v4, 2, v0')
    a('s_and_b32 s50, s41, 7')
    a('s_mul_i32 s50, s50, 320')
    a(f's_add_u32 s50, s50, {3200*4}')
    a('buffer_load_dword v5, v4, s[64:67], s50 offen')
    a('s_add_u32 s50, s50, 15360')
    a('buffer_load_dword v6, v4, s[64:67], s50 offen')
    a(f'v_add_u32 v4, {RARR}, v4')
    a('s_waitcnt vmcnt(0)')
    a('v_add_f32 v5, v5, v6')
    bf16r(a, 5, 6)
    a('ds_write_b32 v4, v5')
    a(f'{lab}:')
    a('s_mov_b64 exec, s[52:53]')
    a('s_waitcnt vmcnt(0) lgkmcnt(0)')
    if asmgen.STAMPS:
        stamp(a, 7)
        stamp_flush(a, 2, 8)
        a('s_waitcnt vmcnt(0)')
    trace(a, 170, 7)
    trace_flush(a, 170, 0, 3)
    a('s_barrier')
    a('s_endpgm')

def dma_groups(tag):
    g = []
    g.append([('s_add_u32 m0, s46, s50', None), ('s_add_u32 s49, s44, 16384', None), ('buffer_load_dwordx4 v7, s[16:19], s44 offen lds', tag)])
    g.append([('s_add_u32 s52, s50, 1024', None), ('s_add_u32 m0, s46, s52', None), ('s_nop 0', None), ('buffer_load_dwordx4 v7, s[16:19], s49 offen lds', tag)])
    g.append([('s_add_u32 m0, s46, s51', None), ('s_add_u32 s44, s44, 131072', None), ('buffer_load_dwordx4 v8, s[20:23], s45 offen lds', tag)])
    g.append([('buffer_load_dwordx4 v8, s[20:23], s45 offen offset:1024 lds', tag)])
    g.append([('buffer_load_dwordx4 v8, s[20:23], s45 offen offset:2048 lds', tag), ('s_add_u32 s45, s45, 12288', None),
              ('s_add_u32 s4, s4, 1', None), ('s_cmp_eq_u32 s4, 20', None), ('s_cselect_b32 s4, 0, s4', None),
              (f's_cselect_b32 s49, {20*131072}, 0', None), (f's_cselect_b32 s52, {20*12288}, 0', None),
              ('s_sub_u32 s44, s44, s49', None), ('s_sub_u32 s45, s45, s52', None),
              (f's_add_u32 s46, s46, {SLOT}', None), (f's_cmp_eq_u32 s46, {NSLOT*SLOT}', None), ('s_cselect_b32 s46, 0, s46', None)])
    return g
def emit_group(vm, grp):
    for (t, tag) in grp:
        if tag: vm.op(t, tag)
        else: vm.a(t)
def dma_stage(vm, tag):
    for g in dma_groups(tag): emit_group(vm, g)
def weave_dma(vm, groups, chunks):
    n = len(groups); m = len(chunks); k = 0
    for i, g in enumerate(groups):
        emit_group(vm, g)
        upto = (m * (i + 1)) // n
        while k < upto:
            chunks[k](); k += 1

def wd_groups(slot):
    t = f'wdl{slot}'
    g = [[(f's_add_u32 s6, s54, {slot*5120}', None), (f's_add_u32 m0, s55, {slot*SLOT}', None), ('s_nop 0', None),
          ('buffer_load_dwordx4 v8, s[36:39], s6 offen lds', t)]]
    for m in range(1, 4): g.append([(f'buffer_load_dwordx4 v8, s[36:39], s6 offen offset:{1024*m} lds', t)])
    g.append([('s_add_u32 s6, s6, 4096', None), (f's_add_u32 m0, s55, {slot*SLOT + 4096}', None), ('s_nop 0', None),
              ('buffer_load_dwordx4 v8, s[36:39], s6 offen lds', t)])
    return g
def wd_lds(vm, slot):
    for g in wd_groups(slot): emit_group(vm, g)

WDR = 12
ACTR = 112
def poll(a, vm, off_expr_sgpr, target, tag):
    vm.op('buffer_load_dword v6, v5, s[32:35], 0 offen sc1', tag, optional=True)
def poll_check(a, vm, target, tag):
    last = max(i for i, (t, o) in enumerate(vm.ops) if t == tag)
    n = len(vm.ops[last+1:])
    a(f's_waitcnt vmcnt({n})')
    lp, done = a.label('k34_spin'), a.label('k34_pdone')
    a(f's_mov_b32 s59, {SPIN}')
    a(f'{lp}:')
    a('v_readfirstlane_b32 s60, v6')
    a(f's_cmp_ge_u32 s60, {target}')
    a(f's_cbranch_scc1 {done}')
    a('s_sub_u32 s59, s59, 1')
    a('s_cmp_eq_u32 s59, 0')
    a(f's_cbranch_scc1 {done}')
    a('s_sleep 1')
    a('buffer_load_dword v6, v5, s[32:35], 0 offen sc1')
    a('s_waitcnt vmcnt(0)')
    a(f's_branch {lp}')
    a(f'{done}:')

def hbar(a):
    trace(a, 1, 7)
    a('s_barrier')
    trace(a, 1, 7)
def trace_flush_h(a):
    if asmgen.TRACE:
        a('v_mov_b32 v2, v1')
        trace_flush(a, 2, 0, 3)

def helper_path(a, outf):
    vm = VM(a)
    trace_init(a, 1, 7); trace(a, 1, 7)
    PART = FOLDA
    a('s_sub_u32 s58, s3, 4')
    a('v_and_b32 v9, 63, v0')
    a('v_lshrrev_b32 v10, 4, v9')
    a('v_and_b32 v11, 15, v9')
    a('v_lshlrev_b32 v4, 2, v10')
    a('v_xor_b32 v11, v11, v4')
    a('v_mov_b32 v3, v11')
    a('v_lshlrev_b32 v11, 4, v11')
    a('v_lshl_add_u32 v7, v10, 12, v11')
    a('v_lshlrev_b32 v8, 4, v9')
    a('s_mul_i32 s4, s41, 5')
    a('s_lshr_b32 s4, s4, 2')
    a('s_mul_i32 s5, s41, 40')
    a('s_lshl_b32 s53, s4, 5')
    a('s_sub_u32 s5, s5, s53')
    a('s_lshl_b32 s44, s58, 15')
    a('s_lshl_b32 s45, s40, 8')
    a('s_add_u32 s44, s44, s45')
    a('s_lshl_b32 s53, s4, 17')
    a('s_add_u32 s44, s44, s53')
    a('s_mul_i32 s45, s41, 245760')
    a('s_mul_i32 s46, s58, 3072')
    a('s_add_u32 s45, s45, s46')
    a('s_mul_i32 s53, s4, 12288')
    a('s_add_u32 s45, s45, s53')
    a('s_lshl_b32 s50, s58, 11')
    a('s_add_u32 s51, s46, 8192')
    a('s_mov_b32 s46, 0')
    a('s_lshl_b32 s53, s40, 7')
    a('v_mov_b32 v5, s53')
    a('v_mov_b32 v6, 0')
    a('s_waitcnt lgkmcnt(0)')
    srd(a, 16, 14, Y.SZ['X1T'], Y.X1T); srd(a, 20, 14, Y.SZ['WP'], Y.WP)
    for st in range(4): dma_stage(vm, f'st{st}')
    srd(a, 24, 14, Y.SZ['STP'], Y.STP); srd(a, 28, 14, Y.SZ['ACT'], Y.ACT); srd(a, 32, 14, Y.SZ['FLG'], Y.FLG)
    srd(a, 36, 14, Y.SZ['WDP'], Y.WDP); srd(a, 68, 14, Y.SZ['STAT2'], Y.STAT2)
    srd(a, 76, 12, 2048*1280)
    a('s_and_b32 s54, s41, 7')
    a('s_mul_i32 s54, s54, 48')
    a('s_mul_i32 s55, s58, 12')
    a('s_add_u32 s54, s54, s55')
    a('s_mul_i32 s54, s54, 5120')
    a('s_mul_i32 s55, s58, 5120')
    for r in range(16, 32): a(f'v_mov_b32 v{r}, 0')
    vm.wait('st1'); hbar(a)
    def unit(i):
        def f():
            skip = a.label('k34_su')
            if i == 2:
                a('s_cmp_ge_u32 s58, 2'); a(f's_cbranch_scc1 {skip}')
            a('s_waitcnt lgkmcnt(0)') if False else None
            for k in range(4):
                d = 40 + 4*i + k
                a(f'v_lshlrev_b32 v56, 16, v{d}')
                a(f'v_and_b32 v57, 0xffff0000, v{d}')
                a(f'v_add_f32 v{16+2*k}, v{16+2*k}, v56')
                a(f'v_add_f32 v{17+2*k}, v{17+2*k}, v57')
                a(f'v_fmac_f32 v{24+2*k}, v56, v56')
                a(f'v_fmac_f32 v{25+2*k}, v57, v57')
            if i == 2: a(f'{skip}:')
        return f
    for i in range(3):
        a(f's_lshl_b32 s53, s58, 2'); a(f's_add_u32 s53, s53, {16*i}'); a('s_add_u32 s53, s53, s5')
        a('s_min_u32 s53, s53, 60')
        a('s_lshr_b32 s59, s53, 5'); a(f's_mul_i32 s59, s59, {SLOT}')
        a('s_and_b32 s53, s53, 31'); a('s_lshl_b32 s53, s53, 8'); a('s_add_u32 s53, s53, s59')
        a('v_add_u32 v2, s53, v8')
        a(f'ds_read_b128 v[{40+4*i}:{43+4*i}], v2')
    def part_write():
        a('v_lshrrev_b32 v10, 4, v9')
        a('s_lshl_b32 s53, s58, 2')
        a('v_add_u32 v10, s53, v10')
        a('v_lshlrev_b32 v10, 4, v10')
        a('v_add_u32 v10, v10, v3')
        a('v_lshlrev_b32 v10, 4, v10')
        a(f'v_add_u32 v10, {PART}, v10')
        for k in range(4): a(f'ds_write_b128 v10, v[{16+4*k}:{19+4*k}] offset:{4096*k}')
    nop = lambda: None
    dma_stage(vm, 'st4'); dma_stage(vm, 'st5')
    vm.wait('st2'); a('s_waitcnt lgkmcnt(0)'); hbar(a)
    weave_dma(vm, dma_groups('st6'), [nop, unit(0), nop, nop, nop])
    vm.wait('st4'); hbar(a)
    weave_dma(vm, dma_groups('st7') + dma_groups('st8'), [nop, unit(1), nop, nop, unit(2), nop, nop, part_write, nop, nop])
    vm.wait('st6'); a('s_waitcnt lgkmcnt(0)'); hbar(a)
    a('s_cmp_ge_u32 s58, 2')
    a('s_cbranch_scc1 k34_nopub')
    a('v_subrev_u32 v9, 256, v0')
    a('v_lshrrev_b32 v10, 3, v9')
    a('v_lshlrev_b32 v10, 4, v10')
    a('v_and_b32 v11, 3, v9')
    a('v_lshl_add_u32 v10, v11, 2, v10')
    a('v_bfe_u32 v11, v9, 2, 1')
    a('v_lshl_add_u32 v10, v11, 12, v10')
    a(f'v_add_u32 v10, {PART}, v10')
    for p in range(16):
        a(f'ds_read_b32 v{32+p}, v10 offset:{256*p}')
        a(f'ds_read_b32 v{48+p}, v10 offset:{256*p + 8192}')
    a('k34_nopub:')
    dma_stage(vm, 'st9')
    a('s_cmp_ge_u32 s58, 2')
    a('s_cbranch_scc1 k34_nopub2')
    a('s_waitcnt lgkmcnt(0)')
    for st in (8, 4, 2, 1):
        for p in range(st):
            a(f'v_add_f32 v{32+p}, v{32+p}, v{32+p+st}')
            a(f'v_add_f32 v{48+p}, v{48+p}, v{48+p+st}')
    a('v_mov_b32 v33, v48')
    a('v_lshlrev_b32 v10, 3, v9')
    a('s_lshl_b32 s53, s40, 4'); a('s_add_u32 s53, s53, s41'); a('s_lshl_b32 s53, s53, 10')
    vm.op('buffer_store_dwordx2 v[32:33], v10, s[68:71], s53 offen sc1', 'pub', optional=True)
    a('k34_nopub2:')
    dma_stage(vm, 'st10')
    vm.wait('st8'); hbar(a)
    def st_loads(k0, k1):
        lab = a.label('k34_nost')
        a('s_cmp_eq_u32 s58, 3')
        a(f's_cbranch_scc1 {lab}')
        a('v_subrev_u32 v11, 256, v0')
        a('v_lshlrev_b32 v11, 3, v11')
        a('s_mul_i32 s53, s41, 1536')
        a(f's_add_u32 s53, s53, {k0*16*1536}')
        for kr in range(k0, k1):
            vm.op(f'buffer_load_dwordx2 v[{64+2*kr}:{65+2*kr}], v11, s[24:27], s53 offen', 'ST', optional=True)
            a(f's_add_u32 s53, s53, {16*1536}')
        a(f'{lab}:')
    st_loads(0, 4)
    dma_stage(vm, 'st11'); dma_stage(vm, 'st12')
    vm.wait('st10'); hbar(a)
    lab = a.label('k34_c1')
    a('s_cmp_lg_u32 s58, 0')
    a(f's_cbranch_scc1 {lab}')
    a('s_mov_b64 exec, 1')
    a('v_mov_b32 v11, 1')
    vm.op('buffer_atomic_add v11, v5, s[32:35], 0 offen sc1', 'c1', optional=True)
    a('s_mov_b64 exec, -1')
    a(f'{lab}:')
    st_loads(4, 7)
    dma_stage(vm, 'st13'); dma_stage(vm, 'st14')
    vm.wait('st12'); hbar(a)
    st_loads(7, 10)
    dma_stage(vm, 'st15'); dma_stage(vm, 'st16')
    vm.wait('st14'); hbar(a)
    a('s_cmp_lg_u32 s58, 0')
    a('s_cbranch_scc1 k34_np1')
    poll(a, vm, 53, 16, 'p1')
    a('k34_np1:')
    dma_stage(vm, 'st17'); dma_stage(vm, 'st18')
    a('s_cmp_lg_u32 s58, 0')
    a('s_cbranch_scc1 k34_np2')
    poll_check(a, vm, 16, 'p1')
    a('k34_np2:')
    vm.wait('st16'); hbar(a)
    a('s_lshl_b32 s53, s40, 4')
    a('s_add_u32 s53, s53, s58')
    a('s_lshl_b32 s53, s53, 10')
    for i in range(4):
        vm.op(f'buffer_load_dwordx4 v[{32+4*i}:{35+4*i}], v8, s[68:71], s53 offen sc1', 'G')
        a('s_add_u32 s53, s53, 4096')
    dma_stage(vm, 'st19')
    a('s_cmp_eq_u32 s58, 3')
    a('s_cbranch_scc1 k34_nost2')
    for p in range(5):
        a(f'v_add_f32 v{64+2*p}, v{64+2*p}, v{74+2*p}')
        a(f'v_add_f32 v{65+2*p}, v{65+2*p}, v{75+2*p}')
    for p in (1, 2, 3, 4):
        a(f'v_add_f32 v64, v64, v{64+2*p}')
        a(f'v_add_f32 v65, v65, v{65+2*p}')
    a('v_cvt_pk_bf16_f32 v66, v64, v64')
    a('v_cvt_pk_bf16_f32 v67, v65, v65')
    a('v_and_b32 v68, 0xffff0000, v66')
    a('v_and_b32 v69, 0xffff0000, v67')
    a('v_sub_f32 v68, v64, v68')
    a('v_sub_f32 v69, v65, v69')
    a('v_mov_b32 v72, v66')
    a('v_cvt_pk_bf16_f32 v73, v68, v65')
    a('v_cvt_pk_bf16_f32 v74, v65, v69')
    a('v_mov_b32 v75, 0')
    a('v_subrev_u32 v11, 256, v0')
    a('v_lshlrev_b32 v10, 4, v11')
    a(f'v_add_u32 v10, {FOLDA}, v10')
    a('ds_write_b128 v10, v[72:75]')
    a('k34_nost2:')
    if 'latewd' not in ABL: wd_lds(vm, 6)
    vm.wait('st18'); hbar(a)
    if 'latewd' not in ABL: wd_lds(vm, 0)
    vm.wait('G')
    for i in range(1, 4):
        for k in range(4): a(f'v_add_f32 v{32+k}, v{32+k}, v{32+4*i+k}')
    a('s_lshl_b32 s53, s58, 10')
    a(f's_add_u32 s53, s53, {GPART}')
    a('v_add_u32 v10, s53, v8')
    a('ds_write_b128 v10, v[32:35]')
    if 'latewd' not in ABL: wd_lds(vm, 1)
    vm.wait('st19'); a('s_waitcnt lgkmcnt(0)'); hbar(a)
    a('s_cmp_ge_u32 s58, 2')
    a('s_cbranch_scc1 k34_nofold0')
    a('v_subrev_u32 v9, 256, v0')
    a('v_lshlrev_b32 v10, 3, v9')
    a(f'v_add_u32 v10, {GPART}, v10')
    for p in range(4): a(f'ds_read_b64 v[{32+2*p}:{33+2*p}], v10 offset:{1024*p}')
    a('s_waitcnt lgkmcnt(0)')
    for b in (32, 33):
        a(f'v_add_f32 v{b}, v{b}, v{b+2}'); a(f'v_add_f32 v{b+4}, v{b+4}, v{b+6}'); a(f'v_add_f32 v{b}, v{b}, v{b+4}')
    a('v_mov_b32 v48, v33')
    a(f'v_mul_f32 v32, {f32(-1/640)}, v32')
    a(f'v_mul_f32 v48, {f32(1/640)}, v48')
    a('v_fma_f32 v48, -v32, v32, v48')
    a('v_max_f32 v48, 0, v48')
    a(f'v_add_f32 v48, {f32(1e-5)}, v48')
    a('v_sqrt_f32 v33, v48')
    a('v_rsq_f32 v34, v48')
    a('v_cvt_pk_bf16_f32 v35, v32, v32')
    a('v_cvt_pk_bf16_f32 v36, v33, v33')
    a('v_and_b32 v37, 0xffff0000, v35')
    a('v_and_b32 v38, 0xffff0000, v36')
    a('v_sub_f32 v37, v32, v37')
    a('v_sub_f32 v38, v33, v38')
    a('v_cvt_pk_bf16_f32 v40, v32, v37')
    a('v_cvt_pk_bf16_f32 v41, v32, v33')
    a('v_cvt_pk_bf16_f32 v42, v38, v33')
    a('v_mov_b32 v43, 0')
    a('v_lshlrev_b32 v10, 4, v9')
    a(f'v_add_u32 v10, {FOLDB}, v10')
    a('ds_write_b128 v10, v[40:43]')
    a('v_mov_b32 v35, v48')
    a('v_lshlrev_b32 v10, 3, v9')
    a(f'v_add_u32 v10, {RARR}, v10')
    a('ds_write_b64 v10, v[34:35]')
    a('k34_nofold0:')
    if 'latewd' not in ABL: wd_lds(vm, 2); wd_lds(vm, 3)
    a('s_waitcnt lgkmcnt(0)')
    hbar(a)
    if 'latewd' in ABL:
        for sl in (6, 0, 1, 2, 3): wd_lds(vm, sl)
    def wdr(j):
        b = WDR + 20*j
        a(f's_add_u32 s53, s54, {(7+j)*5120}')
        for m in range(4): vm.op(f'buffer_load_dwordx4 v[{b+4*m}:{b+4*m+3}], v8, s[36:39], s53 offen offset:{1024*m}', 'wdr')
        a('s_add_u32 s53, s53, 4096')
        vm.op(f'buffer_load_dwordx4 v[{b+16}:{b+19}], v8, s[36:39], s53 offen', 'wdr')
    for j in range(3): wdr(j)
    a('s_lshr_b32 s61, s41, 3')
    a('s_lshl_b32 s62, s40, 1')
    a('s_add_u32 s61, s61, s62')
    a('s_mul_i32 s62, s61, 48')
    a('s_mul_i32 s63, s58, 12')
    a('s_add_u32 s62, s62, s63')
    a('s_lshl_b32 s62, s62, 12')
    for tl in range(4):
        a(f's_add_u32 s63, s58, {tl}')
        a('s_and_b32 s63, s63, 3')
        a('s_lshl_b32 s63, s63, 10')
        a(f's_add_u32 s{72+tl}, s62, s63')
    a('v_add_u32 v4, s55, v8')
    a('s_lshl_b32 s53, s40, 1')
    a('s_lshr_b32 s6, s41, 3')
    a('s_add_u32 s53, s53, s6')
    a('s_lshl_b32 s53, s53, 2')
    a('s_add_u32 s53, s53, s58')
    a('s_lshl_b32 s53, s53, 7')
    a('s_add_u32 s53, s53, 2048')
    a('v_mov_b32 v5, s53')
    a('v_and_b32 v2, 63, v0')
    a('v_lshrrev_b32 v3, 4, v2')
    a('v_bfe_u32 v9, v2, 2, 2')
    a('v_lshl_add_u32 v9, v3, 2, v9')
    a('v_lshlrev_b32 v9, 7, v9')
    a('v_and_b32 v10, 3, v2')
    a('v_lshl_add_u32 v9, v10, 3, v9')
    a('s_lshl_b32 s50, s58, 5')
    a(f's_add_u32 s50, s50, {X1L}')
    a('v_add_u32 v9, s50, v9')
    a('s_lshl_b32 s50, s61, 6')
    a('s_lshl_b32 s51, s58, 4')
    a('s_add_u32 s50, s50, s51')
    a('v_and_b32 v7, 15, v2')
    a('v_add_u32 v7, s50, v7')
    a('v_mul_u32_u24 v7, 1280, v7')
    a('v_lshl_add_u32 v7, v3, 3, v7')
    a('s_and_b32 s5, s41, 7')
    a('s_mul_i32 s50, s5, 160')
    a('v_add_u32 v7, s50, v7')
    a('s_mul_i32 s50, s58, 15360')
    a(f's_add_u32 s50, s50, {RED}')
    a('v_add_u32 v10, s50, v8')
    a('v_lshlrev_b32 v11, 4, v3')
    a(f'v_add_u32 v11, {RARR}, v11')
    if asmgen.STAMPS: stamp(a, 0)
    hbar(a)
    wdr(3); wdr(4)
    wd_lds(vm, 4)
    a('buffer_load_dword v6, v5, s[32:35], 0 offen sc1')
    wd_lds(vm, 5)
    a('s_waitcnt vmcnt(5)')
    lp, done = a.label('k34_spin'), a.label('k34_pdone')
    a(f's_mov_b32 s59, {SPIN}')
    a(f'{lp}:')
    a('v_readfirstlane_b32 s60, v6')
    a('s_cmp_ge_u32 s60, 8')
    a(f's_cbranch_scc1 {done}')
    a('s_sub_u32 s59, s59, 1')
    a('s_cmp_eq_u32 s59, 0')
    a(f's_cbranch_scc1 {done}')
    a('s_sleep 2')
    a('buffer_load_dword v6, v5, s[32:35], 0 offen sc1')
    a('s_waitcnt vmcnt(0)')
    a(f's_branch {lp}')
    a(f'{done}:')
    trace(a, 1, 7)
    if asmgen.STAMPS: stamp(a, 1)
    Tof = lambda j: (7 + j) if j < 5 else (j - 5)
    def act_loads(j):
        b = ACTR + 16*(j % 4)
        o = []
        for tl in range(4):
            o.append((f's_add_u32 s63, s{72+tl}, {Tof(j)*4096}', None))
            o.append((f'buffer_load_dwordx4 v[{b+4*tl}:{b+4*tl+3}], v8, s[28:31], s63 offen sc1', f'a{j}'))
        return o
    def emit(lst):
        for (t, tag) in lst:
            if tag: vm.op(t, tag)
            else: a(t)
    for j in range(4): emit(act_loads(j))
    for j in range(12):
        vm.wait(f'a{j}')
        if j >= 5: a('s_waitcnt lgkmcnt(0)')
        if j == 0 and asmgen.STAMPS: stamp(a, 2)
        fill = []
        if 5 <= j + 4 <= 11 and j >= 1:
            jj = j + 4
            b = WDR + 20*(jj % 5)
            for m in range(5): fill.append((f'ds_read_b128 v[{b+4*m}:{b+4*m+3}], v4 offset:{(jj-5)*SLOT + 1024*m}', None)) if (jj-5)*SLOT + 4096 < 65536 else None
        if j >= 1 and j + 3 <= 11: fill += act_loads(j + 3)
        big = []
        if 5 <= j + 4 <= 11 and j >= 1 and (j + 4 - 5)*SLOT + 4096 >= 65536:
            jj = j + 4
            b = WDR + 20*(jj % 5)
            big.append((f'v_add_u32 v3, {(jj-5)*SLOT}, v4', None))
            for m in range(5): big.append((f'ds_read_b128 v[{b+4*m}:{b+4*m+3}], v3 offset:{1024*m}', None))
        fill = big + fill
        bw = WDR + 20*(j % 5); ba = ACTR + 16*(j % 4)
        k = 0; n = len(fill); idx = 0
        for m in range(5):
            for tl in range(4):
                acc = 20*tl + 4*m
                c = '0' if j == 0 else f'a[{acc}:{acc+3}]'
                a(f'v_mfma_f32_16x16x32_bf16 a[{acc}:{acc+3}], v[{bw+4*m}:{bw+4*m+3}], v[{ba+4*tl}:{ba+4*tl+3}], {c}')
                idx += 1
                upto = min(n, idx) if idx < 20 else n
                while k < upto:
                    emit([fill[k]]); k += 1
    if asmgen.STAMPS: stamp(a, 3)
    hbar(a)
    for tl in range(1, 4):
        a(f's_add_u32 s50, s58, {tl}')
        a('s_and_b32 s50, s50, 3')
        a('s_mul_i32 s50, s50, 15360')
        a(f's_add_u32 s50, s50, {RED + (tl-1)*5120}')
        a(f'v_add_u32 v{3+tl}, s50, v8')
    X, GB = 100, 36
    for m in range(5):
        a(f'ds_read_b64_tr_b16 v[{X+2*m}:{X+2*m+1}], v9 offset:{2048*m}')
        a(f'ds_read_b128 v[{GB+4*m}:{GB+4*m+3}], v11 offset:{64*m}')
    for tl in range(1, 4):
        for m in range(5):
            a(f'ds_write_b128 v{3+tl}, a[{20*tl+4*m}:{20*tl+4*m+3}] offset:{1024*m}')
    for m in range(5):
        for r in range(4): a(f'v_accvgpr_read_b32 v{16+4*m+r}, a{4*m+r}')
    a('s_waitcnt lgkmcnt(0)')
    hbar(a)
    if asmgen.STAMPS: stamp(a, 4)
    Rr = 112
    for sl in range(3):
        for m in range(5):
            a(f'ds_read_b128 v[{Rr+20*sl+4*m}:{Rr+20*sl+4*m+3}], v10 offset:{(sl*5+m)*1024}')
    XF = 60
    for m in range(5):
        a(f'v_lshlrev_b32 v{XF+4*m}, 16, v{X+2*m}')
        a(f'v_and_b32 v{XF+4*m+1}, 0xffff0000, v{X+2*m}')
        a(f'v_lshlrev_b32 v{XF+4*m+2}, 16, v{X+2*m+1}')
        a(f'v_and_b32 v{XF+4*m+3}, 0xffff0000, v{X+2*m+1}')
    for sl in range(3):
        a(f's_waitcnt lgkmcnt({10-5*sl})')
        for i in range(20): a(f'v_add_f32 v{16+i}, v{16+i}, v{Rr+20*sl+i}')
    for m in range(5):
        for r in range(4): a(f'v_fma_f32 v{XF+4*m+r}, v{GB+4*m+r}, v{16+4*m+r}, v{XF+4*m+r}')
        a(f'v_cvt_pk_bf16_f32 v{160+2*m}, v{XF+4*m}, v{XF+4*m+1}')
        a(f'v_cvt_pk_bf16_f32 v{161+2*m}, v{XF+4*m+2}, v{XF+4*m+3}')
        a(f'buffer_store_dwordx2 v[{160+2*m}:{161+2*m}], v7, s[76:79], 0 offen offset:{32*m} {outf}')
    if asmgen.STAMPS:
        stamp(a, 5)
        a('s_waitcnt vmcnt(0)')
        stamp(a, 6)
        a('v_subrev_u32 v0, 256, v0')
        stamp_flush(a, 3, 7)
    trace(a, 1, 7)
    trace_flush_h(a)
    hstamp_end(a, 2, 8)
    a('s_endpgm')

def k34(a, stf='', outf=''):
    kernel_begin(a, 'k34_kernel')
    hstamp_start(a, 2)
    a('s_cmp_ge_u32 s2, 256')
    a('s_cbranch_scc1 k34_exit')
    stamp(a, 0)
    wave_id(a, 3, 1)
    a('s_load_dwordx2 s[12:13], s[0:1], 104')
    a('s_load_dwordx2 s[14:15], s[0:1], 120')
    a('s_and_b32 s42, s2, 7')
    a('s_lshr_b32 s43, s2, 3')
    a('s_and_b32 s40, s42, 1')
    a('s_lshl_b32 s40, s40, 3')
    a('s_and_b32 s44, s43, 7')
    a('s_add_u32 s40, s40, s44')
    a('s_lshr_b32 s41, s42, 1')
    a('s_lshl_b32 s41, s41, 2')
    a('s_lshr_b32 s44, s43, 3')
    a('s_add_u32 s41, s41, s44')
    a('s_cmp_lt_u32 s3, 4')
    a('s_cbranch_scc0 k34_helper')
    a('s_waitcnt lgkmcnt(0)')
    srd(a, 16, 14, Y.SZ['X1T'], Y.X1T); srd(a, 28, 14, Y.SZ['ACT'], Y.ACT); srd(a, 32, 14, Y.SZ['FLG'], Y.FLG); srd(a, 68, 14, Y.SZ['STAT2'], Y.STAT2); srd(a, 64, 14, Y.SZ['MOD'], Y.MOD)
    mfma_path(a, stf)
    a('k34_helper:')
    helper_path(a, outf)
    a('k34_exit:')
    a('s_endpgm')
```

```python
from asmgen import *
LOG2E = 1.4426950408889634
def cexp(a, dst, p, zr, zi, t0, t1):
    if p == 1:
        a(f'v_exp_f32 v{t0}, v{zr}')
        a(f'v_fract_f32 v{t1}, v{zi}')
    else:
        a(f'v_mul_f32 v{t0}, {f32(float(p))}, v{zr}')
        a(f'v_mul_f32 v{t1}, {f32(float(p))}, v{zi}')
        a(f'v_exp_f32 v{t0}, v{t0}')
        a(f'v_fract_f32 v{t1}, v{t1}')
    a(f'v_cos_f32 v{dst}, v{t1}')
    a(f'v_sin_f32 v{dst+1}, v{t1}')
    a('s_nop 0')
    a(f'v_mul_f32 v{dst}, v{dst}, v{t0}')
    a(f'v_mul_f32 v{dst+1}, v{dst+1}, v{t0}')
def cmul(a, d, x, y):
    assert d != x and d != y and d % 2 == 0 and x % 2 == 0 and y % 2 == 0
    a(f'v_pk_mul_f32 v[{d}:{d+1}], v[{x}:{x+1}], v[{y}:{y+1}] op_sel:[0,0] op_sel_hi:[1,0]')
    a(f'v_pk_fma_f32 v[{d}:{d+1}], v[{x}:{x+1}], v[{y}:{y+1}], v[{d}:{d+1}] op_sel:[1,1,0] op_sel_hi:[0,1,1] neg_lo:[1,0,0]')
def hmul_a(a, d, x, w):
    assert d != x and d != w
    a(f'v_pk_mul_f16 v{d}, v{x}, v{w} op_sel:[0,0] op_sel_hi:[1,0]')
    a(f'v_pk_fma_f16 v{d}, v{x}, v{w}, v{d} op_sel:[1,1,0] op_sel_hi:[0,1,1] neg_hi:[1,0,0]')
def hmul_b(a, d, x, w):
    assert d != x and d != w
    a(f'v_pk_mul_f16 v{d}, v{x}, v{w} op_sel:[0,0] op_sel_hi:[1,0]')
    a(f'v_pk_fma_f16 v{d}, v{x}, v{w}, v{d} op_sel:[1,1,0] op_sel_hi:[0,1,1] neg_lo:[1,0,0]')

def kgen(a):
    RS = 288; AOFF = 16 * RS
    ZR, ZI, T0, T1, W = 4, 5, 6, 7, 8
    a('v_lshlrev_b32 v3, 16, v3')
    a('v_lshlrev_b32 v4, 16, v4')
    a('v_lshlrev_b32 v5, 16, v5')
    a('v_lshlrev_b32 v10, 16, v10')
    a('v_lshlrev_b32 v11, 16, v11')
    a(f'v_mul_f32 v3, {f32(LOG2E)}, v3')
    a(f'v_mul_f32 v4, {f32(LOG2E)}, v4')
    a('v_exp_f32 v3, v3')
    a('v_exp_f32 v4, v4')
    a('s_nop 0')
    bf16r(a, 3, T0); bf16r(a, 4, T0)
    a('v_mul_f32 v4, v4, v3')
    a('v_mul_f32 v5, v5, v3')
    a(f'v_mul_f32 v4, {f32(-LOG2E)}, v4')
    a(f'v_mul_f32 v5, {f32(1/(2*3.141592653589793))}, v5')
    BF, AF, ACC = 48, 64, 80
    def wr(row_off, reg): a(f'ds_write_addtid_b32 v{reg} offset:{row_off}')
    P8, P16, P24, P32, P64 = 12, 14, 16, 18, 20
    cexp(a, P8, 8, ZR, ZI, T0, T1)
    cmul(a, P16, P8, P8); cmul(a, P24, P16, P8); cmul(a, P32, P16, P16); cmul(a, P64, P32, P32); cmul(a, 22, P64, P32)
    H = 24
    for i, r in enumerate((P8, P16, P24, P32, P64, 22)): a(f'v_cvt_pk_f16_f32 v{H+1+i}, v{r}, v{r+1}')
    a(f'v_mov_b32 v{H}, 0x3c00')
    wr(0, H)
    for b in range(1, 4): wr(b*RS, H+b)
    for aa in range(1, 4):
        wr(4*aa*RS, H+3+aa)
        for b in range(1, 4):
            d = 32 + ((aa*3 + b) & 3)
            hmul_b(a, d, H+3+aa, H+b)
            wr((4*aa+b)*RS, d)
    for ks in range(4):
        a(f'ds_read_b128 v[{BF+4*ks}:{BF+4*ks+3}], v2 offset:{64*ks}')
    A32 = (10, 12)
    cexp(a, W, 1, ZR, ZI, T0, T1)
    AH = 14
    cur = 10
    for i in range(8):
        a(f'v_cvt_pk_f16_f32 v{AH+i}, v{cur}, -v{cur+1}')
        wr(AOFF + i*RS, AH+i)
        if i < 7:
            nxt = 12 if cur == 10 else 10
            cmul(a, nxt, cur, W); cur = nxt
    def wpow(p, dst):
        cexp(a, W, p, ZR, ZI, T0, T1)
        a(f'v_cvt_pk_f16_f32 v{dst}, v{W}, v{W+1}')
    WH = 30
    wpow(128, WH)
    for i in range(8):
        hmul_a(a, AH+8+i, AH+i, WH); wr(AOFF + (8+i)*RS, AH+8+i)
    def rd_a():
        for ks in range(4):
            a(f'ds_read_b128 v[{AF+4*ks}:{AF+4*ks+3}], v2 offset:{AOFF + 64*ks}')
    def mm(t):
        for ks in range(4):
            c = '0' if ks == 0 else f'v[{ACC+4*t}:{ACC+4*t+3}]'
            a(f'v_mfma_f32_16x16x32_f16 v[{ACC+4*t}:{ACC+4*t+3}], v[{AF+4*ks}:{AF+4*ks+3}], v[{BF+4*ks}:{BF+4*ks+3}], {c}')
    rd_a()
    wpow(256, WH)
    a('s_waitcnt lgkmcnt(0)')
    mm(0)
    a0 = lambda i: AH + i
    a128 = lambda i: AH + 8 + i
    K256, K260, K384, K388, K512, K640, K768, K896, K1024 = 32, 33, 34, 35, 36, 37, 38, 39, 40
    tmp = [41, 42]
    def prod(row, src, keep=None):
        dst = keep if keep is not None else tmp[row & 1]
        hmul_a(a, dst, src, WH); wr(AOFF + row*RS, dst)
    prod(0, a0(0), K256); prod(1, a0(2)); prod(2, a0(4), K260); prod(3, a0(6))
    prod(4, a128(0), K384); prod(5, a128(2)); prod(6, a128(4), K388); prod(7, a128(6))
    wpow(512, WH)
    prod(8, a0(0), K512); prod(9, a0(4)); prod(10, a128(0), K640); prod(11, a128(4))
    prod(12, K256, K768); prod(13, K260); prod(14, K384, K896); prod(15, K388)
    rd_a()
    wpow(1024, WH)
    a('s_waitcnt lgkmcnt(0)')
    mm(1)
    prod(0, a0(0), K1024); prod(1, a128(0)); prod(2, K256); prod(3, K384)
    prod(4, K512); prod(5, K640); prod(6, K768); prod(7, K896)
    prod(8, K1024)
    rd_a()
    a('v_add_u32 v10, s42, v44')
    a('v_add_u32 v12, s42, v45')
    a('v_add_u32 v13, s42, v46')
    a('v_add_u32 v14, s42, v47')
    a('s_waitcnt lgkmcnt(0)')
    mm(2)
    a(f'ds_write_b128 v10, v[{ACC}:{ACC+3}]')
    a(f'ds_write_b64 v12, v[{ACC+4}:{ACC+5}]')
    a(f'ds_write_b64 v13, v[{ACC+6}:{ACC+7}]')
    a('s_nop 7')
    for r in range(4):
        a(f'ds_write_b32 v14, v{ACC+8+r} offset:{64*r}')


def const_tables(a, TBL):
    import layout as Y
    a('.p2align 4')
    a('.type k1_tab_w,@object')
    a('k1_tab_w:')
    for l in range(64):
        j, g = l & 15, l >> 4
        t0 = ((g & 1) * 4 + (g >> 1) * 128 + 8 * j) * 4
        ia = 256 + 64 * g + j * (4 if g < 2 else 2)
        ib = ia + (2 if g < 2 else 32)
        t2 = (512 + 64 * g + j) * 4
        a(f'.long {t0}, {ia*4}, {ib*4}, {t2}')
    a('.type k1_tab_g,@object')
    a('k1_tab_g:')
    for t in range(256):
        a('.short ' + ', '.join(str(TBL + 2 * Y.pos_idx(8*t + i)) for i in range(8)))
```

```python
import sys
from asmgen import *
import layout as Y
import k1
def build(kernels, stf=''):
    a = Asm()
    launches = []
    if 'k1' in kernels: launches.append(f'; @launch kernel=k1_kernel grid=({k1.K1_GRID},1,1) block=(256,1,1) lds={k1.K1_LDS}')
    try:
        import k2
        if 'k2' in kernels: launches.append(f'; @launch kernel=k2_kernel grid=({k2.K2_GRID},1,1) block=(256,1,1) lds={k2.K2_LDS}')
    except ImportError: pass
    try:
        import k3
        if 'k3' in kernels: launches.append(f'; @launch kernel=k3_kernel grid=({k3.K3_GRID},1,1) block=({k3.K3_BLOCK},1,1) lds={k3.K3_LDS}')
    except ImportError: pass
    import k34
    if 'k34' in kernels: launches.append(f'; @launch kernel=k34_kernel grid=({k34.K34_GRID},1,1) block=({k34.K34_BLOCK},1,1) lds={k34.K34_LDS}')
    try:
        import k4
        if 'k4' in kernels: launches.append(f'; @launch kernel=k4_kernel grid=({k4.K4_GRID},1,1) block=(256,1,1) lds={k4.K4_LDS}')
    except ImportError: pass
    hdr = [l for l in open('adaLN_cond__ssm_conv_s4d__geglu_ffn__prompt.s.ref').read().split('\n') if l.startswith(';') and '@launch' not in l and 'Override launch' not in l and 'grid=ceil' not in l]
    hdr = hdr[:18]
    a('\n'.join(hdr))
    if 'mark' in kernels:
        l2 = []
        for i, l in enumerate(launches):
            l2.append(l); l2.append(f'; @launch kernel=mark{i}_kernel grid=(256,1,1) block=(64,1,1) lds=0')
        launches = l2
    a('\n'.join(launches))
    a('.amdgcn_target "amdgcn-amd-amdhsa--gfx950"')
    a('.text')
    if 'k1' in kernels: k1.k1(a, stf)
    if 'k2' in kernels: k2.k2(a, stf)
    if 'k3' in kernels: k3.k3(a, stf)
    if 'k4' in kernels: k4.k4(a, stf)
    if 'k34' in kernels: k34.k34(a, stf, __import__('os').environ.get('OUTF', ''))
    a('s_endpgm')
    if 'k1' in kernels:
        import kgen
        kgen.const_tables(a, 27648 - 1312)
    a('code_end:')
    if 'mark' in kernels:
        for i in range(4):
            kernel_begin(a, f'mark{i}_kernel')
            stamp(a, 0)
            stamp_flush(a, 4 + i, 1)
            a('s_endpgm')
        for i in range(4): descriptor(a, f'mark{i}_kernel', 16)
    if 'k1' in kernels: descriptor(a, 'k1_kernel', 96)
    if 'k2' in kernels: descriptor(a, 'k2_kernel', k2.K2_VGPR)
    if 'k3' in kernels: descriptor(a, 'k3_kernel', k3.K3_VGPR, accum=k3.K3_ACC)
    if 'k4' in kernels: descriptor(a, 'k4_kernel', k4.K4_VGPR, accum=k4.K4_ACC)
    if 'k34' in kernels: descriptor(a, 'k34_kernel', k34.K34_VGPR, accum=k34.K34_ACC)
    return a.text()
if __name__ == '__main__':
    out = sys.argv[1]
    ks = sys.argv[2].split(',')
    stf = sys.argv[3] if len(sys.argv) > 3 else 'sc1'
    import asmgen
    asmgen.STAMPS = len(sys.argv) > 4 and sys.argv[4] == 'stamps'
    asmgen.HSTAMP = len(sys.argv) > 4 and sys.argv[4] == 'hstamp'
    asmgen.TRACE = len(sys.argv) > 4 and sys.argv[4] == 'trace'
    asmgen.NLAUNCH = len([k for k in ks if k.startswith('k')])
    open(out, 'w').write(build(ks, stf))
```
